```python
import torch

def _softmax(x, axis=-1):
    return torch.softmax(x, dim=axis)
def _gelu(x):
    return torch.nn.functional.gelu(x, approximate="tanh")
def _silu(x):
    return torch.nn.functional.silu(x)
def _sigmoid(x):
    return torch.sigmoid(x)
def _layernorm(x, axis=-1, eps=1e-5):
    m = x.mean(dim=axis, keepdim=True)
    v = x.var(dim=axis, keepdim=True, unbiased=False)
    return (x - m) / torch.sqrt(v + eps)
def _scatter_add(tgt, idx, src, axis=0):
    return tgt.clone().index_add_(axis, idx, src)
def _segment_sum(src, seg, n):
    out = torch.zeros((n,) + src.shape[1:], dtype=src.dtype)
    return out.index_add_(0, seg, src)
def _pad(x, pw):
    flat = tuple(v for pair in reversed(pw) for v in pair)
    return torch.nn.functional.pad(x, flat)

kernel_name = 'interleave_layers__grouped_kv_mqa__sliding_block__prompt'

def setup_inputs():

    _w = (lambda a: (lambda t: t.to(torch.bfloat16) if t.is_floating_point() else t)(torch.as_tensor(a)))
    def _A_setup():
        B, S, D, H = 1, 2048, 512, 32
        Dh = D // H
        return {
            "x": _w((lambda *s: torch.randn(*s, dtype=torch.bfloat16) * 0.05)(B, S, D)),
            "wq": _w((lambda *s: torch.randn(*s, dtype=torch.bfloat16) * 0.05)(D, H * Dh)),
            "wk": _w((lambda *s: torch.randn(*s, dtype=torch.bfloat16) * 0.05)(D, Dh)),
            "wv": _w((lambda *s: torch.randn(*s, dtype=torch.bfloat16) * 0.05)(D, Dh)),
            "wo": _w((lambda *s: torch.randn(*s, dtype=torch.bfloat16) * 0.05)(H * Dh, D)),
        }
    _A_in = _A_setup()

    def _B_setup():
        B, S, D = 1, 2048, 512
        return {
            "x": _w((lambda *s: torch.randn(*s, dtype=torch.bfloat16) * 0.05)(B, S, D)),
            "wqkv": _w((lambda *s: torch.randn(*s, dtype=torch.bfloat16) * 0.05)(D, 3 * D)),
            "wo": _w((lambda *s: torch.randn(*s, dtype=torch.bfloat16) * 0.05)(D, D)),
        }
    _B_in = _B_setup()

    return {
        "A_x": _A_in["x"],
        "A_wq": _A_in["wq"],
        "A_wk": _A_in["wk"],
        "A_wv": _A_in["wv"],
        "A_wo": _A_in["wo"],
        "B_x": _B_in["x"],
        "B_wqkv": _B_in["wqkv"],
        "B_wo": _B_in["wo"],
    }

def reference(A_x, A_wq, A_wk, A_wv, A_wo, B_x, B_wqkv, B_wo):
    def _A_ref(x, wq, wk, wv, wo):
        B, S, D = x.shape
        H = 32
        Dh = D // H
        q = (lambda x, *d: x.permute(*d))((x @ wq).reshape(B, S, H, Dh), 0, 2, 1, 3)
        k = x @ wk
        v = x @ wv
        scores = torch.einsum("bhqd,bkd->bhqk", q, k) * (Dh ** -0.5)
        p = _softmax(scores, axis=-1)
        o = torch.einsum("bhqk,bkd->bhqd", p, v)
        return (lambda x, *d: x.permute(*d))(o, 0, 2, 1, 3).reshape(B, S, H * Dh) @ wo

    def _B_ref(x, wqkv, wo):
        B, S, D = x.shape
        H = 32; Dh = D // H; W = 256
        qkv = (lambda x, *d: x.permute(*d))((x @ wqkv).reshape(B, S, 3, H, Dh), 2, 0, 3, 1, 4)
        q, k, v = qkv[0], qkv[1], qkv[2]
        scores = torch.einsum("bhqd,bhkd->bhqk", q, k) * (Dh ** -0.5)
        idx = torch.arange(S)
        mask = (idx[:, None] - idx[None, :] >= 0) & (idx[:, None] - idx[None, :] < W)
        scores = torch.where(mask[None, None], scores, -1e9)
        p = _softmax(scores, axis=-1)
        o = torch.einsum("bhqk,bhkd->bhqd", p, v)
        return (lambda x, *d: x.permute(*d))(o, 0, 2, 1, 3).reshape(B, S, D) @ wo

    x = A_x
    x = x + _A_ref(_layernorm(x, axis=-1), A_wq, A_wk, A_wv, A_wo)
    x = x + _B_ref(_layernorm(x, axis=-1), B_wqkv, B_wo)
    x = x + _A_ref(_layernorm(x, axis=-1), A_wq, A_wk, A_wv, A_wo)
    x = x + _B_ref(_layernorm(x, axis=-1), B_wqkv, B_wo)
    return x
```

```python
import re

class Asm:
    def __init__(self):
        self.lines = []
    def e(self, s):
        for l in s.split("\n"):
            l = l.strip()
            if l:
                self.lines.append("    " + l)
    def label(self, l):
        self.lines.append(l + ":")
    def raw(self, s):
        self.lines.append(s)
    def c(self, s):
        self.lines.append("    ; " + s)
    def text(self):
        return "\n".join(self.lines) + "\n"

def vr(a, n=1, p="v"):
    return f"{p}{a}" if n == 1 else f"{p}[{a}:{a+n-1}]"
def sr(a, n=1):
    return vr(a, n, "s")

_REG = re.compile(r"\b([vas])(?:(\d+)|\[(\d+):(\d+)\])")
TRANS = ("v_exp_", "v_log_", "v_rcp_", "v_rsq_", "v_sqrt_", "v_sin_", "v_cos_")

def regs(tok):
    out = set()
    for m in _REG.finditer(tok):
        p = m.group(1)
        if m.group(2) is not None:
            out.add((p, int(m.group(2))))
        else:
            for i in range(int(m.group(3)), int(m.group(4)) + 1):
                out.add((p, i))
    if re.search(r"\bvcc\b", tok): out |= {("s", 106), ("s", 107)}
    if re.search(r"\bexec\b", tok): out |= {("s", 126), ("s", 127)}
    if re.search(r"\bm0\b", tok): out |= {("s", 124)}
    return out

def split_ops(rest):
    ops = []; depth = 0; cur = ""
    for ch in rest:
        if ch == "[": depth += 1
        if ch == "]": depth -= 1
        if ch == "," and depth == 0:
            ops.append(cur.strip()); cur = ""
        else:
            cur += ch
    if cur.strip(): ops.append(cur.strip())
    return ops

class I:
    def __init__(self, text):
        self.text = text
        t = text.split(";")[0].strip()
        parts = t.split(None, 1)
        self.op = parts[0]
        self.ops = split_ops(parts[1]) if len(parts) > 1 else []
        op = self.op
        self.mfma = op.startswith("v_mfma") or op.startswith("v_smfmac")
        self.smfmac = op.startswith("v_smfmac")
        self.valu = op.startswith("v_") and not self.mfma
        self.trans = op.startswith(TRANS)
        self.dot = op.startswith("v_dot")
        self.vmem = op.startswith(("buffer_", "global_", "flat_", "scratch_"))
        self.ds = op.startswith("ds_")
        self.salu = op.startswith("s_")
        self.lds_dma = self.vmem and (" lds" in t or "_lds_" in op)
        self.permlane = op.startswith("v_permlane")
        self.dpp = "_dpp" in op or "row_" in t or "quad_perm" in t
        self.readlane = op.startswith(("v_readlane", "v_readfirstlane"))
        self.W = set(); self.R = set(); self.A = set(); self.B = set(); self.C = set(); self.storedata = set()
        o = self.ops
        if self.mfma:
            self.W = regs(o[0]); self.A = regs(o[1]); self.B = regs(o[2])
            if self.smfmac:
                self.C = regs(o[0]); self.B |= regs(o[3])
            else:
                self.C = regs(o[3])
            self.R = self.A | self.B | self.C
            self.passes = 8 if "32x32" in op else 4
        elif self.valu:
            if op.startswith("v_cmp"):
                self.W = regs(o[0]); self.R = set().union(*[regs(x) for x in o[1:]])
                if op.startswith("v_cmpx"): self.W |= {("s", 126), ("s", 127)}
            elif self.permlane:
                self.W = regs(o[0]) | regs(o[1]); self.R = set(self.W)
            elif op.startswith(("v_add_co", "v_sub_co", "v_addc_co", "v_subb_co", "v_subrev_co")):
                self.W = regs(o[0]) | regs(o[1]); self.R = set().union(*[regs(x) for x in o[2:]])
            elif op == "v_nop":
                pass
            else:
                self.W = regs(o[0]); self.R = set().union(*[regs(x) for x in o[1:]]) if len(o) > 1 else set()
                if op.startswith(("v_fmac", "v_dot2c", "v_pk_fmac")) or "UNUSED_PRESERVE" in t or self.dpp: self.R |= self.W
                if op.startswith("v_cndmask") and len(o) == 3: self.R |= {("s", 106), ("s", 107)}
        elif self.vmem:
            allr = set().union(*[regs(x) for x in o]) if o else set()
            if "store" in op or ("atomic" in op):
                self.R = allr
                if op.startswith("buffer_"): self.storedata = regs(o[0])
                else: self.storedata = regs(o[1])
                if "atomic" in op and "sc0" in t: self.W = regs(o[0])
            elif self.lds_dma:
                self.R = allr | {("s", 124)}
            elif o:
                self.W = regs(o[0]); self.R = set().union(*[regs(x) for x in o[1:]])
        elif self.ds:
            if "read" in op or "permute" in op or "swizzle" in op or "rtn" in op:
                self.W = regs(o[0]); self.R = set().union(*[regs(x) for x in o[1:]])
            else:
                self.R = set().union(*[regs(x) for x in o])
        elif self.salu:
            if op.startswith(("s_cmp", "s_cbranch", "s_branch", "s_waitcnt", "s_barrier", "s_nop", "s_endpgm", "s_sleep", "s_setprio", "s_bitcmp")):
                self.R = set().union(*[regs(x) for x in o]) if o else set()
            else:
                self.W = regs(o[0]); self.R = set().union(*[regs(x) for x in o[1:]]) if len(o) > 1 else set()
                if "saveexec" in op: self.W |= {("s", 126), ("s", 127)}
        self.states = 1
        if op == "s_nop": self.states = int(o[0], 0) + 1

def need(p, c):
    n = 0
    def mx(a, why):
        nonlocal n, reason
        if a > n: n = a; reason = why
    reason = ""
    vW = {r for r in p.W if r[0] in "va"}
    sW = {r for r in p.W if r[0] == "s"}
    if p.mfma:
        P = p.passes
        if c.mfma:
            if vW & c.C:
                if c.C == p.W and c.passes == P: pass
                else: mx(P + 2, "xdl D->C overlap")
            if vW & (c.A | c.B): mx(P + 4, "xdl D->A/B")
            if (vW & c.W) and not (vW & c.C): mx(P + 2, "xdl WAW (conservative)")
        elif c.valu or c.vmem or c.ds:
            if vW & (c.R | c.W): mx(P + 4, "xdl D->valu/mem")
        if c.valu and (p.C & c.W): mx(P - 1, "xdl C WAR")
    if p.valu:
        if c.mfma and (vW & c.R): mx(3 if p.dot else 2, "valu->mfma")
        if p.trans and (c.valu or c.mfma) and not c.trans and (vW & c.R): mx(1, "trans->valu")
        if (c.permlane) and (vW & c.R): mx(2, "valu->permlane")
        if c.dpp and (vW & c.R): mx(2, "valu->dpp")
        if c.readlane and (vW & c.R): mx(1, "valu->readlane")
        if c.vmem and (sW & c.R): mx(5, "valu sgpr->vmem")
        if c.valu and (sW & c.R): mx(2, "valu sgpr->valu const")
        if c.readlane and (sW & c.R): mx(4, "valu sgpr->lane select")
        if p.dot and (vW & (c.R | c.W)) and (c.valu or c.vmem or c.ds):
            if c.op == p.op and not (vW & set().union(*[regs(x) for x in c.ops[1:3]])): pass
            else: mx(3, "dot->other")
        if ("sdwa" in p.op or "op_sel" in p.text) and c.valu and (vW & (c.R | c.W)) and not p.op.startswith("v_pk_"): mx(1, "opsel->valu")
        if (("s", 126) in sW):
            if c.mfma: mx(4, "valu exec->mfma")
            if c.dpp: mx(5, "valu exec->dpp")
            if c.readlane or c.permlane: mx(4, "valu exec->readlane")
    if p.salu and ("s", 124) in p.W and c.lds_dma: mx(1, "m0->lds dma")
    if p.vmem and len(p.storedata) >= 3 and (p.storedata & c.W):
        mx(2 if c.valu or c.mfma else 1, "store data WAR")
    if p.ds and not p.W and False: pass
    return n, reason

def check_seq(seq, problems, tag=""):
    for j, c in enumerate(seq):
        dist = 0
        for i in range(j - 1, -1, -1):
            p = seq[i]
            n, why = need(p, c)
            if n > dist:
                problems.add((tag, p.text.strip(), c.text.strip(), n, dist, why))
            dist += p.states
            if dist > 22: break

def check(text):
    items = []
    labels = {}
    for ln in text.split("\n"):
        t = ln.split(";")[0].strip()
        if not t or t.startswith("."): continue
        if t.endswith(":"):
            labels[t[:-1]] = len(items); continue
        items.append(I(ln))
    problems = set()
    seg = []
    for it in items:
        seg.append(it)
        if it.op in ("s_branch", "s_endpgm", "s_setpc_b64"):
            check_seq(seg, problems); seg = []
    check_seq(seg, problems)
    for k, it in enumerate(items):
        if it.op.startswith(("s_cbranch", "s_branch")):
            tgt = labels.get(it.ops[0])
            if tgt is None: continue
            pre = items[max(0, k - 24):k + 1]
            for q in range(len(pre) - 2, -1, -1):
                if pre[q].op in ("s_branch", "s_endpgm", "s_setpc_b64"):
                    pre = pre[q + 1:]; break
            post = []
            for x in items[tgt:tgt + 24]:
                post.append(x)
                if x.op in ("s_branch", "s_endpgm", "s_setpc_b64"): break
            check_seq(pre + post, problems, "br")
    return sorted(problems)
```

```python
import sys, math, struct
from asmlib import *

NAME = "interleave_layers__grouped_kv_mqa__sliding_block__prompt"
WF = 0x000000
T_Q, T_KV, T_OA, T_B, T_OB, T_N = 0, 16, 17, 33, 81, 97
CS = 0x310000
XF = 0x400000
QF = 0x600000
KF = 0x800000
VF = 0xA00000
KA = 0xC00000
VA = 0xC10000
WS_SIZE = 0x1000000
QSCALE = 0.25 * math.log2(math.e)
def f32(x): return "0x%08x" % struct.unpack("<I", struct.pack("<f", x))[0]
ONES2 = "0x3f803f80"
NEGBIG = f32(-1e30)

kernels = []
a = Asm()

def kstart(label, nwg):
    a.raw(f".globl {label}\n.p2align 8\n.type {label},@function")
    a.label(label)
    a.e(f"s_cmp_ge_u32 s2, {nwg}")
    a.e(f"s_cbranch_scc1 L_end_{label}")

def kend(label):
    a.label(f"L_end_{label}")
    a.e("s_endpgm")

def srd(d, b, size):
    a.e(f"s_mov_b32 s{d}, s{b}\ns_mov_b32 s{d+1}, s{b+1}\ns_mov_b32 s{d+2}, {size:#x}\ns_mov_b32 s{d+3}, 0x20000")

def gen_prep():
    L = "prep_kernel"
    kstart(L, 161)
    a.e("s_load_dwordx16 s[16:31], s[0:1], 0")
    a.e("s_load_dwordx2 s[4:5], s[0:1], 80")
    a.e("s_getpc_b64 s[6:7]")
    a.label("L_pc0")
    a.e("v_lshlrev_b32 v1, 6, v0")
    a.e("v_min_u32 v1, L_text_end-L_pc0-4, v1")
    a.e("global_load_dword v60, v1, s[6:7]")
    a.e("v_and_b32 v1, 63, v0")
    a.e("v_lshrrev_b32 v2, 6, v0")
    a.e("v_and_b32 v3, 31, v0")
    a.e("v_readfirstlane_b32 s3, v2")
    a.e("v_bfe_u32 v4, v0, 5, 1")
    a.e("v_lshlrev_b32 v5, 4, v1")
    a.e("s_waitcnt lgkmcnt(0)")
    srd(8, 4, WS_SIZE)
    a.e("s_cmp_ge_u32 s2, 97")
    a.e("s_cbranch_scc1 L_prep_x")
    a.e("s_mov_b32 s15, 0x20000")
    a.e("s_mov_b32 s12, s18\ns_mov_b32 s13, s19\ns_mov_b32 s14, 0x80000\ns_mov_b32 s33, 1024\ns_lshl_b32 s34, s2, 5")
    a.e(f"s_cmp_lt_u32 s2, {T_KV}\ns_cbranch_scc1 L_prep_w")
    a.e("s_mov_b32 s12, s20\ns_mov_b32 s13, s21\ns_mov_b32 s14, 0x4000\ns_mov_b32 s33, 32\ns_mov_b32 s34, 0")
    a.e(f"s_cmp_lt_u32 s2, {T_OA}\ns_cbranch_scc1 L_prep_w")
    a.e(f"s_mov_b32 s12, s24\ns_mov_b32 s13, s25\ns_mov_b32 s14, 0x80000\ns_mov_b32 s33, 1024\ns_sub_u32 s34, s2, {T_OA}\ns_lshl_b32 s34, s34, 5")
    a.e(f"s_cmp_lt_u32 s2, {T_B}\ns_cbranch_scc1 L_prep_w")
    a.e(f"s_mov_b32 s12, s28\ns_mov_b32 s13, s29\ns_mov_b32 s14, 0x180000\ns_mov_b32 s33, 3072\ns_sub_u32 s34, s2, {T_B}\ns_lshl_b32 s34, s34, 5")
    a.e(f"s_cmp_lt_u32 s2, {T_OB}\ns_cbranch_scc1 L_prep_w")
    a.e(f"s_mov_b32 s12, s30\ns_mov_b32 s13, s31\ns_mov_b32 s14, 0x80000\ns_mov_b32 s33, 1024\ns_sub_u32 s34, s2, {T_OB}\ns_lshl_b32 s34, s34, 5")
    a.label("L_prep_w")
    a.e("v_lshlrev_b32 v6, 2, v4")
    a.e("v_mul_lo_u32 v6, v6, s33")
    a.e("v_add_u32 v7, s34, v3")
    a.e(f"s_cmp_lg_u32 s2, {T_KV}\ns_cbranch_scc1 L_prep_notkv")
    a.e("v_and_b32 v7, 15, v3")
    a.e("s_mov_b32 exec_lo, 0xffff\ns_mov_b32 exec_hi, 0xffff")
    a.label("L_prep_notkv")
    a.e("s_mov_b64 s[36:37], exec\ns_mov_b64 exec, -1")
    a.e("v_lshl_add_u32 v6, v7, 1, v6")
    a.e("s_mov_b64 exec, s[36:37]")
    a.e("s_lshl_b32 s35, s3, 6")
    a.e("s_mul_i32 s35, s35, s33")
    def loads(srd_):
        for ks in range(4):
            for j in range(8):
                k = 16 * ks + 8 * (j // 4) + j % 4
                a.e(f"s_mul_i32 s38, s33, {k}\ns_add_u32 s38, s38, s35")
                a.e(f"buffer_load_ushort v{16+ks*8+j}, v6, s[{srd_}:{srd_+3}], s38 offen")
    loads(12)
    a.e(f"s_cmp_lg_u32 s2, {T_KV}\ns_cbranch_scc1 L_prep_packw")
    a.e("s_mov_b32 s40, s22\ns_mov_b32 s41, s23\ns_mov_b32 s42, 0x4000\ns_mov_b32 s43, 0x20000")
    a.e("s_mov_b32 exec_lo, 0xffff0000\ns_mov_b32 exec_hi, 0xffff0000")
    loads(40)
    a.label("L_prep_packw")
    a.e("s_mov_b64 exec, -1")
    a.e("s_waitcnt vmcnt(0)")
    for q in range(16):
        a.e(f"v_lshl_or_b32 v{16+q}, v{16+2*q+1}, 16, v{16+2*q}")
    a.e("v_mov_b32 v8, 0")
    a.e(f"s_mov_b32 s39, {ONES2}")
    for q in range(16):
        a.e(f"v_dot2_f32_bf16 v8, v{16+q}, s39, v8")
    a.e("s_lshl_b32 s38, s2, 15\ns_lshl_b32 s35, s3, 12\ns_add_u32 s38, s38, s35")
    for ks in range(4):
        a.e(f"buffer_store_dwordx4 v[{16+4*ks}:{19+4*ks}], v5, s[8:11], s38 offen offset:{ks*1024}")
    a.e("v_lshlrev_b32 v9, 4, v3")
    a.e("v_lshl_add_u32 v9, v2, 1, v9")
    a.e("v_add_lshl_u32 v9, v9, v4, 2")
    a.e("ds_write_b32 v9, v8")
    a.e("s_waitcnt lgkmcnt(0)\ns_barrier")
    a.e("s_cmp_lg_u32 s3, 0\ns_cbranch_scc1 L_end_prep_kernel")
    a.e("v_lshlrev_b32 v9, 6, v3")
    for q in range(4):
        a.e(f"ds_read_b128 v[{32+4*q}:{35+4*q}], v9 offset:{16*q}")
    a.e("s_waitcnt lgkmcnt(0)")
    for q in range(1, 16):
        a.e(f"v_add_f32 v32, v32, v{32+q}")
    a.e(f"s_lshl_b32 s38, s2, 7\ns_add_u32 s38, s38, {CS}")
    a.e("v_lshlrev_b32 v9, 2, v3")
    a.e("buffer_store_dword v32, v9, s[8:11], s38 offen")
    a.e("s_endpgm")
    a.label("L_prep_x")
    srd(12, 16, 0x200000)
    a.e("s_sub_u32 s34, s2, 97")
    a.e("v_lshlrev_b32 v6, 10, v3")
    a.e("v_lshl_add_u32 v6, v4, 3, v6")
    a.e("s_lshl_b32 s35, s34, 15\ns_lshl_b32 s38, s3, 7\ns_add_u32 s38, s38, s35")
    for ks in range(4):
        a.e(f"buffer_load_dwordx2 v[{16+4*ks}:{17+4*ks}], v6, s[12:15], s38 offen offset:{ks*32}")
        a.e(f"buffer_load_dwordx2 v[{18+4*ks}:{19+4*ks}], v6, s[12:15], s38 offen offset:{ks*32+16}")
    a.e(f"s_lshl_b32 s38, s3, 12\ns_add_u32 s38, s38, s35\ns_add_u32 s38, s38, {XF}")
    a.e("s_waitcnt vmcnt(0)")
    for ks in range(4):
        a.e(f"buffer_store_dwordx4 v[{16+4*ks}:{19+4*ks}], v5, s[8:11], s38 offen offset:{ks*1024}")
    kend(L)
    kernels.append((L, 64, 48))

V_L16, V_I, V_H, V_T0 = 1, 2, 3, 4
ACC = 16
XW = 48
ST = 80
XA = 88
RES = 92
WR = 112

def gemm_common_setup():
    a.e("s_load_dwordx2 s[4:5], s[0:1], 80")
    a.e("s_load_dwordx2 s[6:7], s[0:1], 64")
    a.e(f"v_and_b32 v{V_L16}, 63, v0")
    a.e(f"v_lshrrev_b32 v{V_T0}, 6, v0")
    a.e(f"v_and_b32 v{V_I}, 31, v0")
    a.e(f"v_readfirstlane_b32 s3, v{V_T0}")
    a.e(f"v_bfe_u32 v{V_H}, v0, 5, 1")
    a.e(f"v_lshlrev_b32 v{V_L16}, 4, v{V_L16}")

def dma(n1k, s_src, s_m0):
    for c in range(n1k):
        if c % 4 == 0:
            if c: a.e(f"s_add_u32 s{s_src}, s{s_src}, 4096\ns_add_u32 s{s_m0}, s{s_m0}, 4096")
            a.e(f"s_mov_b32 m0, s{s_m0}")
            a.e("s_nop 0")
        a.e(f"buffer_load_dwordx4 v{V_L16}, s[8:11], s{s_src} offen offset:{(c%4)*1024} lds")

def wloads(s_base, s_rot, s_tmp):
    for g in range(4):
        a.e(f"s_add_u32 s{s_tmp}, s{s_rot}, {g}\ns_and_b32 s{s_tmp}, s{s_tmp}, 3\ns_lshl_b32 s{s_tmp}, s{s_tmp}, 13")
        a.e(f"v_add_u32 v{XA+g}, s{s_tmp}, v{V_L16}")
        a.e(f"s_add_u32 s{s_tmp}, s{s_tmp}, s{s_base}")
        for q in range(8):
            if q == 4: a.e(f"s_add_u32 s{s_tmp}, s{s_tmp}, 4096")
            s = g * 8 + q
            a.e(f"buffer_load_dwordx4 v[{WR+4*s}:{WR+4*s+3}], v{V_L16}, s[8:11], s{s_tmp} offen offset:{(q%4)*1024}")

def gemm_main(orient, nrt, stats, extra_vm, lds_rt_off=0):
    nbuf = 8 // nrt
    def xreg(s, r): return XW + 4 * ((s % nbuf) * nrt + r)
    def rd(s):
        for r in range(nrt):
            a.e(f"ds_read_b128 v[{xreg(s,r)}:{xreg(s,r)+3}], v{XA+s//8} offset:{(s%8)*1024 + r*32768}")
    pre = nbuf - 1
    for s in range(pre): rd(s)
    if stats:
        for q in range(4 * nrt): a.e(f"v_mov_b32 v{ST+q}, 0")
        a.e(f"s_mov_b32 s39, {ONES2}")
    for s in range(32):
        if s + pre < 32: rd(s + pre)
        outstanding = (min(32, s + pre + 1) - (s + 1)) * nrt
        a.e(f"s_waitcnt vmcnt({31 - s + extra_vm}) lgkmcnt({outstanding})")
        for r in range(nrt):
            w = f"v[{WR+4*s}:{WR+4*s+3}]"; x = f"v[{xreg(s,r)}:{xreg(s,r)+3}]"
            acc = f"v[{ACC+16*r}:{ACC+16*r+15}]"
            c = "0" if s == 0 else acc
            if orient == "T": a.e(f"v_mfma_f32_32x32x16_bf16 {acc}, {w}, {x}, {c}")
            else: a.e(f"v_mfma_f32_32x32x16_bf16 {acc}, {x}, {w}, {c}")
            if stats and s < 8:
                for q in range(4):
                    xx = f"v{xreg(s,r)+q}"
                    s1 = ST + 4 * r + (q % 2); s2 = ST + 4 * r + 2 + (q % 2)
                    a.e(f"v_dot2_f32_bf16 v{s1}, {xx}, s39, v{s1}")
                    a.e(f"v_dot2_f32_bf16 v{s2}, {xx}, {xx}, v{s2}")

STAT_LDS = 65536

def stats_write(nrt):
    a.e("s_nop 2")
    a.e(f"v_lshlrev_b32 v{V_T0}, 6, v{V_I}")
    a.e(f"v_lshl_add_u32 v{V_T0}, v{V_H}, 3, v{V_T0}")
    a.e(f"s_lshl_b32 s38, s3, 4\ns_add_u32 s38, s38, {STAT_LDS}")
    a.e(f"v_add_u32 v{V_T0}, s38, v{V_T0}")
    for r in range(nrt):
        a.e(f"v_add_f32 v{ST+4*r}, v{ST+4*r}, v{ST+4*r+1}")
        a.e(f"v_add_f32 v{ST+4*r+1}, v{ST+4*r+2}, v{ST+4*r+3}")
        a.e(f"ds_write_b64 v{V_T0}, v[{ST+4*r}:{ST+4*r+1}] offset:{r*2048}")

def stats_final(r_imm, s_r, vmean, vrstd, scale):
    a.e(f"v_lshlrev_b32 v{V_T0}, 6, v{V_I}")
    if s_r is not None:
        a.e(f"s_lshl_b32 s38, s{s_r}, 11\ns_add_u32 s38, s38, {STAT_LDS}")
    else:
        a.e(f"s_mov_b32 s38, {STAT_LDS + r_imm*2048}")
    a.e(f"v_add_u32 v{V_T0}, s38, v{V_T0}")
    for q in range(4):
        a.e(f"ds_read_b128 v[{XW+4*q}:{XW+4*q+3}], v{V_T0} offset:{16*q}")
    a.e("s_waitcnt lgkmcnt(0)")
    for q in range(1, 8):
        a.e(f"v_add_f32 v{XW}, v{XW}, v{XW+2*q}")
        a.e(f"v_add_f32 v{XW+1}, v{XW+1}, v{XW+2*q+1}")
    a.e(f"v_mul_f32 v{vmean}, {f32(1/512)}, v{XW}")
    a.e(f"v_mul_f32 v{XW+1}, {f32(1/512)}, v{XW+1}")
    a.e(f"v_fma_f32 v{XW+1}, -v{vmean}, v{vmean}, v{XW+1}")
    a.e(f"v_max_f32 v{XW+1}, 0, v{XW+1}")
    a.e(f"v_add_f32 v{XW+1}, {f32(1e-5)}, v{XW+1}")
    a.e(f"v_rsq_f32 v{vrstd}, v{XW+1}")
    a.e("s_nop 0")
    if scale is not None:
        a.e(f"v_mul_f32 v{vrstd}, {scale}, v{vrstd}")

def epi_T(acc, vmean, vrstd):
    for r in range(16):
        a.e(f"v_fma_f32 v{acc+r}, -v{vmean}, v{RES+r}, v{acc+r}")
    for r in range(16):
        a.e(f"v_mul_f32 v{acc+r}, v{vrstd}, v{acc+r}")
    for q in range(8):
        a.e(f"v_cvt_pk_bf16_f32 v{acc+q}, v{acc+2*q}, v{acc+2*q+1}")

def epi_N(acc, vmean, vrstd):
    a.e(f"s_lshl_b32 s38, s3, 8\ns_add_u32 s38, s38, {STAT_LDS+4096}")
    a.e(f"v_lshlrev_b32 v{V_T0}, 2, v{V_I}")
    a.e(f"v_add_u32 v{V_T0}, s38, v{V_T0}")
    a.e(f"ds_write_b32 v{V_T0}, v{vmean}")
    a.e(f"ds_write_b32 v{V_T0}, v{vrstd} offset:128")
    a.e(f"v_lshlrev_b32 v{V_T0}, 4, v{V_H}")
    a.e(f"v_add_u32 v{V_T0}, s38, v{V_T0}")
    a.e("s_waitcnt lgkmcnt(0)")
    for g in range(4):
        a.e(f"ds_read_b128 v[{XW+4*g}:{XW+4*g+3}], v{V_T0} offset:{32*g}")
        a.e(f"ds_read_b128 v[{XW+16+4*g}:{XW+16+4*g+3}], v{V_T0} offset:{128+32*g}")
    a.e("s_waitcnt lgkmcnt(0)")
    for r in range(16):
        a.e(f"v_fma_f32 v{acc+r}, -v{XW+r}, v{RES}, v{acc+r}")
    for r in range(16):
        a.e(f"v_mul_f32 v{acc+r}, v{XW+16+r}, v{acc+r}")
    for q in range(8):
        a.e(f"v_cvt_pk_bf16_f32 v{acc+q}, v{acc+2*q}, v{acc+2*q+1}")

def cs_loads_T(s_tile):
    a.e(f"s_lshl_b32 s38, s{s_tile}, 7\ns_add_u32 s38, s38, {CS}")
    a.e(f"v_lshlrev_b32 v{V_T0}, 4, v{V_H}")
    for g in range(4):
        a.e(f"buffer_load_dwordx4 v[{RES+4*g}:{RES+4*g+3}], v{V_T0}, s[8:11], s38 offen offset:{32*g}")
    return 4
def cs_loads_N(s_tile):
    a.e(f"s_lshl_b32 s38, s{s_tile}, 7\ns_add_u32 s38, s38, {CS}")
    a.e(f"v_lshlrev_b32 v{V_T0}, 2, v{V_I}")
    a.e(f"buffer_load_dword v{RES}, v{V_T0}, s[8:11], s38 offen")
    return 1

def kperm_addr(vd):
    a.e(f"v_and_b32 v{vd}, 0x330, v{V_L16}")
    a.e(f"v_bfe_u32 v{V_T0+1}, v{V_L16}, 6, 1")
    a.e(f"v_lshl_or_b32 v{vd}, v{V_T0+1}, 7, v{vd}")
    a.e(f"v_bfe_u32 v{V_T0+1}, v{V_L16}, 7, 1")
    a.e(f"v_lshl_or_b32 v{vd}, v{V_T0+1}, 6, v{vd}")

def map_rt_cb():
    a.e("s_and_b32 s20, s2, 7\ns_lshr_b32 s21, s2, 5\ns_lshl_b32 s21, s21, 3\ns_add_u32 s20, s20, s21")
    a.e("s_lshr_b32 s21, s2, 3\ns_and_b32 s21, s21, 3")

def gen_qkva():
    L = "qkva_kernel"
    kstart(L, 256)
    gemm_common_setup()
    map_rt_cb()
    a.e("s_waitcnt lgkmcnt(0)")
    srd(8, 4, WS_SIZE)
    a.e("s_cmp_eq_u32 s3, 4\ns_cbranch_scc1 L_qkva_kv")
    a.e(f"s_lshl_b32 s22, s20, 15\ns_lshl_b32 s23, s3, 13\ns_add_u32 s22, s22, s23\ns_add_u32 s22, s22, {XF}")
    dma(8, 22, 23)
    a.e("s_lshl_b32 s24, s21, 2\ns_add_u32 s24, s24, s3")
    a.e("s_lshl_b32 s25, s24, 15")
    wloads(25, 3, 26)
    ex = cs_loads_T(24)
    a.e(f"s_waitcnt vmcnt({32+ex})\ns_barrier")
    gemm_main("T", 1, True, ex)
    stats_write(1)
    a.e("s_waitcnt lgkmcnt(0)\ns_barrier")
    stats_final(0, None, 10, 11, f32(QSCALE))
    a.e("s_waitcnt vmcnt(0)")
    epi_T(ACC, 10, 11)
    a.e(f"s_lshl_b32 s22, s20, 15\ns_lshl_b32 s23, s24, 11\ns_add_u32 s22, s22, s23\ns_add_u32 s22, s22, {QF}")
    a.e(f"buffer_store_dwordx4 v[{ACC}:{ACC+3}], v{V_L16}, s[8:11], s22 offen")
    a.e(f"buffer_store_dwordx4 v[{ACC+4}:{ACC+7}], v{V_L16}, s[8:11], s22 offen offset:1024")
    a.e("s_endpgm")
    a.label("L_qkva_kv")
    a.e("s_cmp_ge_u32 s21, 2\ns_cbranch_scc1 L_end_qkva_kernel")
    a.e(f"s_mov_b32 s24, {T_KV}\ns_mov_b32 s25, {T_KV*32768}\ns_mov_b32 s27, 0")
    a.e("s_cmp_eq_u32 s21, 1\ns_cbranch_scc1 L_qkva_v")
    wloads(25, 27, 26)
    ex = cs_loads_T(24)
    a.e("s_barrier")
    gemm_main("T", 1, False, ex)
    a.e("s_barrier")
    stats_final(0, None, 10, 11, None)
    a.e("s_waitcnt vmcnt(0)")
    epi_T(ACC, 10, 11)
    kperm_addr(12)
    a.e(f"s_lshl_b32 s22, s20, 10\ns_add_u32 s22, s22, {KA}")
    a.e(f"buffer_store_dwordx4 v[{ACC}:{ACC+3}], v12, s[8:11], s22 offen")
    a.e("s_endpgm")
    a.label("L_qkva_v")
    wloads(25, 27, 26)
    ex = cs_loads_N(24)
    a.e("s_barrier")
    gemm_main("N", 1, False, ex)
    a.e("s_barrier")
    stats_final(0, None, 10, 11, None)
    a.e("s_waitcnt vmcnt(0)")
    epi_N(ACC, 10, 11)
    a.e(f"v_and_b32 v12, 15, v{V_I}")
    a.e(f"v_lshl_add_u32 v12, v{V_H}, 4, v12")
    a.e("v_lshlrev_b32 v12, 4, v12")
    a.e(f"s_lshl_b32 s22, s20, 10\ns_add_u32 s22, s22, {VA}")
    a.e("s_mov_b32 exec_lo, 0xffff0000\ns_mov_b32 exec_hi, 0xffff0000")
    a.e(f"buffer_store_dwordx4 v[{ACC}:{ACC+3}], v12, s[8:11], s22 offen")
    a.e(f"buffer_store_dwordx4 v[{ACC+4}:{ACC+7}], v12, s[8:11], s22 offen offset:512")
    kend(L)
    kernels.append((L, 240, 48))

def gen_oproj():
    for lab, tb, last in (("oproja_kernel", T_OA, 0), ("oprojb_kernel", T_OB, 0), ("oprojl_kernel", T_OB, 1)):
        a.raw(f".globl {lab}\n.p2align 8\n.type {lab},@function")
        a.label(lab)
        a.e(f"s_mov_b32 s30, {tb}\ns_mov_b32 s31, {last}")
        a.e("s_branch L_oproj_body")
        kernels.append((lab, 240, 48))
    a.label("L_oproj_body")
    a.e("s_cmp_ge_u32 s2, 256\ns_cbranch_scc1 L_end_oproj")
    gemm_common_setup()
    map_rt_cb()
    a.e("s_waitcnt lgkmcnt(0)")
    srd(8, 4, WS_SIZE)
    srd(12, 6, 0x200000)
    a.e(f"s_lshl_b32 s22, s20, 15\ns_lshl_b32 s23, s3, 13\ns_add_u32 s22, s22, s23\ns_add_u32 s22, s22, {QF}")
    dma(8, 22, 23)
    a.e("s_lshl_b32 s24, s21, 2\ns_add_u32 s24, s24, s3")
    a.e("s_add_u32 s25, s24, s30\ns_lshl_b32 s25, s25, 15")
    wloads(25, 3, 26)
    a.e(f"s_lshl_b32 s22, s20, 15\ns_lshl_b32 s23, s24, 11\ns_add_u32 s22, s22, s23\ns_add_u32 s22, s22, {XF}")
    a.e(f"buffer_load_dwordx4 v[{RES}:{RES+3}], v{V_L16}, s[8:11], s22 offen")
    a.e(f"buffer_load_dwordx4 v[{RES+4}:{RES+7}], v{V_L16}, s[8:11], s22 offen offset:1024")
    a.e(f"s_waitcnt vmcnt(34)\ns_barrier")
    gemm_main("T", 1, False, 2)
    a.e("s_waitcnt vmcnt(0)")
    for q in range(8):
        a.e(f"v_lshlrev_b32 v{XW+2*q}, 16, v{RES+q}")
        a.e(f"v_and_b32 v{XW+2*q+1}, 0xffff0000, v{RES+q}")
    for r in range(16):
        a.e(f"v_add_f32 v{ACC+r}, v{ACC+r}, v{XW+r}")
    for q in range(8):
        a.e(f"v_cvt_pk_bf16_f32 v{ACC+q}, v{ACC+2*q}, v{ACC+2*q+1}")
    a.e("s_cmp_eq_u32 s31, 1\ns_cbranch_scc1 L_oproj_last")
    a.e(f"buffer_store_dwordx4 v[{ACC}:{ACC+3}], v{V_L16}, s[8:11], s22 offen")
    a.e(f"buffer_store_dwordx4 v[{ACC+4}:{ACC+7}], v{V_L16}, s[8:11], s22 offen offset:1024")
    a.e("s_endpgm")
    a.label("L_oproj_last")
    a.e(f"v_lshlrev_b32 v12, 10, v{V_I}")
    a.e(f"v_lshl_add_u32 v12, v{V_H}, 3, v12")
    a.e("s_lshl_b32 s22, s20, 15\ns_lshl_b32 s23, s24, 6\ns_add_u32 s22, s22, s23")
    for g in range(4):
        a.e(f"buffer_store_dwordx2 v[{ACC+2*g}:{ACC+2*g+1}], v12, s[12:15], s22 offen offset:{16*g}")
    a.label("L_end_oproj")
    a.e("s_endpgm")

def gen_qkvb():
    L = "qkvb_kernel"
    kstart(L, 256)
    gemm_common_setup()
    a.e("s_and_b32 s20, s2, 7\ns_lshr_b32 s21, s2, 6\ns_lshl_b32 s21, s21, 3\ns_add_u32 s20, s20, s21")
    a.e("s_lshr_b32 s21, s2, 3\ns_and_b32 s21, s21, 7")
    a.e("s_waitcnt lgkmcnt(0)")
    srd(8, 4, WS_SIZE)
    a.e(f"s_lshl_b32 s22, s20, 16\ns_lshl_b32 s23, s3, 13\ns_add_u32 s22, s22, s23\ns_add_u32 s22, s22, {XF}")
    dma(8, 22, 23)
    a.e("s_cmp_ge_u32 s3, 4\ns_cbranch_scc1 L_qkvb_v")
    a.e("s_lshr_b32 s28, s3, 1\ns_and_b32 s29, s3, 1")
    a.e("s_lshl_b32 s27, s21, 1\ns_add_u32 s27, s27, s29")
    a.e(f"s_lshl_b32 s24, s28, 4\ns_add_u32 s24, s24, s27\ns_add_u32 s24, s24, {T_B}")
    a.e("s_lshl_b32 s25, s24, 15")
    wloads(25, 3, 26)
    ex = cs_loads_T(24)
    a.e(f"s_waitcnt vmcnt({32+ex})\ns_barrier")
    gemm_main("T", 2, True, ex)
    stats_write(2)
    a.e("s_waitcnt lgkmcnt(0)\ns_barrier")
    a.e(f"s_mov_b32 s33, {f32(QSCALE)}\ns_cmp_eq_u32 s28, 0\ns_cselect_b32 s33, s33, 1.0")
    stats_final(0, None, 10, 11, "s33")
    stats_final(1, None, 13, 14, "s33")
    a.e("s_waitcnt vmcnt(0)")
    epi_T(ACC, 10, 11)
    epi_T(ACC + 16, 13, 14)
    a.e("s_cmp_eq_u32 s28, 1\ns_cbranch_scc1 L_qkvb_k")
    a.e(f"s_lshl_b32 s22, s20, 16\ns_lshl_b32 s23, s27, 11\ns_add_u32 s22, s22, s23\ns_add_u32 s22, s22, {QF}")
    a.e("s_add_u32 s23, s22, 32768")
    for r in range(2):
        for e in range(2):
            b = ACC + 16 * r + 4 * e
            a.e(f"buffer_store_dwordx4 v[{b}:{b+3}], v{V_L16}, s[8:11], s{22+r} offen offset:{e*1024}")
    a.e("s_endpgm")
    a.label("L_qkvb_k")
    kperm_addr(12)
    a.e(f"s_lshl_b32 s22, s27, 17\ns_lshl_b32 s23, s20, 11\ns_add_u32 s22, s22, s23\ns_add_u32 s22, s22, {KF}")
    a.e("s_add_u32 s23, s22, 65536")
    for r in range(2):
        for e in range(2):
            b = ACC + 16 * r + 4 * e
            a.e(f"buffer_store_dwordx4 v[{b}:{b+3}], v12, s[8:11], s{22+e} offen offset:{r*1024}")
    a.e("s_endpgm")
    a.label("L_qkvb_v")
    a.e("s_lshr_b32 s29, s3, 1\ns_and_b32 s29, s29, 1\ns_and_b32 s28, s3, 1")
    a.e("s_lshl_b32 s27, s21, 1\ns_add_u32 s27, s27, s29")
    a.e(f"s_add_u32 s24, s27, {T_B+32}")
    a.e("s_lshl_b32 s25, s24, 15")
    a.e("s_mov_b32 s34, 0")
    wloads(25, 34, 26)
    a.e("s_lshl_b32 s35, s28, 15")
    for g in range(4): a.e(f"v_add_u32 v{XA+g}, s35, v{XA+g}")
    ex = cs_loads_N(24)
    a.e(f"s_waitcnt vmcnt({32+ex})\ns_barrier")
    gemm_main("N", 1, False, ex)
    a.e("s_barrier")
    stats_final(0, 28, 10, 11, None)
    a.e("s_waitcnt vmcnt(0)")
    epi_N(ACC, 10, 11)
    a.e(f"v_and_b32 v12, 15, v{V_I}")
    a.e(f"v_lshl_add_u32 v12, v{V_H}, 4, v12")
    a.e("v_lshlrev_b32 v12, 4, v12")
    a.e(f"v_lshrrev_b32 v13, 4, v{V_I}")
    a.e("v_lshl_add_u32 v12, v13, 16, v12")
    a.e(f"s_lshl_b32 s22, s27, 17\ns_lshl_b32 s23, s20, 11\ns_add_u32 s22, s22, s23\ns_lshl_b32 s23, s28, 10\ns_add_u32 s22, s22, s23\ns_add_u32 s22, s22, {VF}")
    a.e(f"buffer_store_dwordx4 v[{ACC}:{ACC+3}], v12, s[8:11], s22 offen")
    a.e(f"buffer_store_dwordx4 v[{ACC+4}:{ACC+7}], v12, s[8:11], s22 offen offset:512")
    kend(L)
    kernels.append((L, 240, 48))

def attn_finish(O, s_off):
    a.e("s_nop 12")
    a.e(f"v_rcp_f32 v{O+8}, v{O+8}")
    a.e("s_nop 0")
    for r in range(8): a.e(f"v_mul_f32 v{O+r}, v{O+8}, v{O+r}")
    for q in range(4): a.e(f"v_cvt_pk_bf16_f32 v{O+q}, v{O+2*q}, v{O+2*q+1}")
    a.e(f"buffer_store_dwordx4 v[{O}:{O+3}], v{V_L16}, s[8:11], s{s_off} offen")

def gen_attna():
    L = "attna_kernel"
    kstart(L, 256)
    gemm_common_setup()
    Q, IDX, VK, VV = 8, 12, 13, 14
    Kb = [16, 20]; Vb = [24, 32]; S = [48, 64]; O = 80; C = 96; M = 40
    a.e("s_lshr_b32 s20, s2, 2\ns_and_b32 s21, s2, 3\ns_lshl_b32 s21, s21, 3\ns_add_u32 s21, s21, s3")
    a.e("s_waitcnt lgkmcnt(0)")
    srd(8, 4, WS_SIZE)
    a.e(f"s_lshl_b32 s24, s20, 15\ns_lshl_b32 s23, s21, 10\ns_add_u32 s24, s24, s23\ns_add_u32 s24, s24, {QF}")
    a.e(f"buffer_load_dwordx4 v[{Q}:{Q+3}], v{V_L16}, s[8:11], s24 offen")
    a.e(f"s_lshl_b32 s23, s3, 14\ns_add_u32 s22, s23, {KA}")
    dma(16, 22, 23)
    a.e(f"v_mov_b32 v{IDX}, 0xdddddddd")
    a.e(f"v_and_b32 v{VV}, 15, v{V_I}")
    a.e(f"v_lshl_add_u32 v{VV}, v{V_H}, 4, v{VV}")
    a.e(f"v_lshlrev_b32 v{VV}, 4, v{VV}")
    a.e(f"v_add_u32 v{VV}, 0x10000, v{VV}")
    for r in range(16): a.e(f"v_mov_b32 v{Vb[0]+r}, {ONES2}")
    for r in range(16): a.e(f"v_mov_b32 v{O+r}, 0")
    a.e("s_mov_b32 s30, 0xffff\ns_mov_b32 s31, 0xffff")
    a.e("s_waitcnt vmcnt(0)\ns_barrier")
    a.e(f"v_mov_b32 v{VK}, v{V_L16}")
    a.e(f"v_mov_b32 v{M}, {NEGBIG}\nv_mov_b32 v{M+1}, {NEGBIG}")
    a.e("s_mov_b32 s25, 32")
    a.label("L_attna_p1")
    for t in range(2):
        a.e(f"ds_read_b128 v[{Kb[t]}:{Kb[t]+3}], v{VK} offset:{t*1024}")
    a.e(f"v_add_u32 v{VK}, 2048, v{VK}")
    for t in range(2):
        a.e(f"s_waitcnt lgkmcnt({1-t})")
        a.e(f"v_mfma_f32_32x32x16_bf16 v[{S[t]}:{S[t]+15}], v[{Kb[t]}:{Kb[t]+3}], v[{Q}:{Q+3}], 0")
    a.e("s_nop 10")
    for t in range(2):
        if t: a.e("s_nop 2")
        for q in range(8):
            a.e(f"v_max3_f32 v{M+q%2}, v{S[t]+2*q}, v{S[t]+2*q+1}, v{M+q%2}")
    a.e("s_sub_u32 s25, s25, 1\ns_cmp_lg_u32 s25, 0\ns_cbranch_scc1 L_attna_p1")
    a.e(f"v_max_f32 v{M}, v{M}, v{M+1}")
    a.e(f"v_mov_b32 v{M+1}, v{M}")
    a.e("s_nop 1")
    a.e(f"v_permlane32_swap_b32 v{M}, v{M+1}")
    a.e(f"v_max_f32 v{M}, v{M}, v{M+1}")
    for r in range(16): a.e(f"v_sub_f32 v{C+r}, 0, v{M}")
    a.e(f"v_mov_b32 v{VK}, v{V_L16}")
    a.e(f"ds_read_b128 v[{Kb[0]}:{Kb[0]+3}], v{VK}")
    a.e(f"ds_read_b128 v[{Kb[1]}:{Kb[1]+3}], v{VK} offset:1024")
    a.e("s_mov_b64 exec, s[30:31]")
    a.e(f"ds_read_b128 v[{Vb[0]}:{Vb[0]+3}], v{VV}")
    a.e(f"ds_read_b128 v[{Vb[0]+4}:{Vb[0]+7}], v{VV} offset:512")
    a.e("s_mov_b64 exec, -1")
    for r in range(8, 16): a.e(f"v_mov_b32 v{S[1]+r}, 0")
    a.e("s_waitcnt lgkmcnt(3)")
    a.e(f"v_mfma_f32_32x32x16_bf16 v[{S[0]}:{S[0]+15}], v[{Kb[0]}:{Kb[0]+3}], v[{Q}:{Q+3}], v[{C}:{C+15}]")
    U = 4
    a.e(f"s_mov_b32 s25, {64//U}")
    a.e("s_nop 10")
    a.raw(".p2align 6")
    a.label("L_attna_p2")
    for t in range(U):
        c = t % 2; p = 1 - c
        Sc, Sp = S[c], S[p]
        ex = lambda i: a.e(f"v_exp_f32 v{Sc+i}, v{Sc+i}")
        ex(0); ex(1); ex(2)
        a.e(f"v_smfmac_f32_32x32x32_bf16 v[{O}:{O+15}], v[{Vb[p]+4}:{Vb[p]+7}], v[{Sp+8}:{Sp+15}], v{IDX}")
        a.e(f"ds_read_b128 v[{Kb[c]}:{Kb[c]+3}], v{VK} offset:{(t+2)*1024}")
        a.e("s_mov_b64 exec, s[30:31]")
        a.e(f"ds_read_b128 v[{Vb[p]}:{Vb[p]+3}], v{VV} offset:{(t+1)*1024}")
        a.e(f"ds_read_b128 v[{Vb[p]+4}:{Vb[p]+7}], v{VV} offset:{(t+1)*1024+512}")
        a.e("s_mov_b64 exec, -1")
        ex(3); ex(4)
        a.e("s_waitcnt lgkmcnt(3)")
        a.e(f"v_mfma_f32_32x32x16_bf16 v[{Sp}:{Sp+15}], v[{Kb[p]}:{Kb[p]+3}], v[{Q}:{Q+3}], v[{C}:{C+15}]")
        for i in range(5, 11): ex(i)
        a.e(f"v_smfmac_f32_32x32x32_bf16 v[{O}:{O+15}], v[{Vb[c]}:{Vb[c]+3}], v[{Sc}:{Sc+7}], v{IDX}")
        for i in range(11, 16): ex(i)
    a.e(f"v_add_u32 v{VK}, {U*1024}, v{VK}")
    a.e(f"v_add_u32 v{VV}, {U*1024}, v{VV}")
    a.e("s_sub_u32 s25, s25, 1\ns_cmp_lg_u32 s25, 0\ns_cbranch_scc1 L_attna_p2")
    a.e(f"v_smfmac_f32_32x32x32_bf16 v[{O}:{O+15}], v[{Vb[1]+4}:{Vb[1]+7}], v[{S[1]+8}:{S[1]+15}], v{IDX}")
    attn_finish(O, 24)
    kend(L)
    kernels.append((L, 112, 48))

def gen_attnb():
    L = "attnb_kernel"
    kstart(L, 256)
    gemm_common_setup()
    Q, IDX, VV, M = 8, 12, 13, 14
    KR = 16
    VR = 52
    S = [124, 140]; O = 156; CM, CF, CD = 172, 188, 204
    a.e("s_and_b32 s21, s2, 7\ns_lshl_b32 s21, s21, 2\ns_lshr_b32 s22, s3, 1\ns_add_u32 s21, s21, s22")
    a.e("s_lshr_b32 s20, s2, 3\ns_lshl_b32 s20, s20, 1\ns_and_b32 s22, s3, 1\ns_add_u32 s20, s20, s22")
    a.e("s_waitcnt lgkmcnt(0)")
    srd(8, 4, WS_SIZE)
    a.e(f"s_lshl_b32 s24, s20, 15\ns_lshl_b32 s23, s21, 10\ns_add_u32 s24, s24, s23\ns_add_u32 s24, s24, {QF}")
    a.e(f"buffer_load_dwordx4 v[{Q}:{Q+3}], v{V_L16}, s[8:11], s24 offen")
    a.e(f"v_and_b32 v{VV}, 15, v{V_I}")
    a.e(f"v_lshl_add_u32 v{VV}, v{V_H}, 4, v{VV}")
    a.e(f"v_lshlrev_b32 v{VV}, 4, v{VV}")
    for r in range(72): a.e(f"v_mov_b32 v{VR+r}, {ONES2}")
    a.e("s_lshl_b32 s25, s21, 16")
    a.e("s_mov_b32 s30, 0xffff\ns_mov_b32 s31, 0xffff")
    for t in range(9):
        a.e(f"s_add_i32 s26, s20, {t-8}\ns_max_i32 s26, s26, 0\ns_lshl_b32 s26, s26, 10\ns_add_u32 s{40+t}, s26, s25")
        a.e(f"s_add_u32 s26, s{40+t}, {KF}")
        a.e(f"buffer_load_dwordx4 v[{KR+4*t}:{KR+4*t+3}], v{V_L16}, s[8:11], s26 offen")
    a.e("s_mov_b64 exec, s[30:31]")
    for t in range(9):
        a.e(f"s_add_u32 s26, s{40+t}, {VF}")
        a.e(f"buffer_load_dwordx4 v[{VR+8*t}:{VR+8*t+3}], v{VV}, s[8:11], s26 offen")
        a.e(f"buffer_load_dwordx4 v[{VR+8*t+4}:{VR+8*t+7}], v{VV}, s[8:11], s26 offen offset:512")
    a.e("s_mov_b64 exec, -1")
    a.e(f"v_mov_b32 v{IDX}, 0xdddddddd")
    for r in range(16): a.e(f"v_mov_b32 v{O+r}, 0")
    a.e(f"v_lshlrev_b32 v{V_T0}, 3, v{V_H}")
    a.e(f"v_sub_u32 v{V_T0}, v{V_I}, v{V_T0}")
    a.e(f"v_mov_b32 v{V_T0+1}, {NEGBIG}")
    for r in range(16):
        kk = 16 * (r // 8) + 4 * ((r // 4) & 1) + r % 4
        a.e(f"v_cmp_le_i32 vcc, {kk}, v{V_T0}")
        a.e("s_nop 1")
        a.e(f"v_cndmask_b32 v{CD+r}, v{V_T0+1}, 0, vcc")
        a.e(f"v_cndmask_b32 v{CF+r}, 0, v{V_T0+1}, vcc")
    a.e(f"v_mov_b32 v{M}, {NEGBIG}\nv_mov_b32 v{M+1}, {NEGBIG}")
    for t in range(9):
        if t < 8:
            a.e(f"s_cmp_lt_u32 s20, {8-t}\ns_cbranch_scc1 L_attnb_p1_{t}")
        a.e(f"s_waitcnt vmcnt({18+8-t})")
        c = f"v[{CF}:{CF+15}]" if t == 0 else (f"v[{CD}:{CD+15}]" if t == 8 else "0")
        a.e(f"v_mfma_f32_32x32x16_bf16 v[{S[0]}:{S[0]+15}], v[{KR+4*t}:{KR+4*t+3}], v[{Q}:{Q+3}], {c}")
        a.e("s_nop 11")
        for q in range(8):
            a.e(f"v_max3_f32 v{M+q%2}, v{S[0]+2*q}, v{S[0]+2*q+1}, v{M+q%2}")
        if t < 8: a.label(f"L_attnb_p1_{t}")
    a.e(f"v_max_f32 v{M}, v{M}, v{M+1}")
    a.e(f"v_mov_b32 v{M+1}, v{M}")
    a.e("s_nop 1")
    a.e(f"v_permlane32_swap_b32 v{M}, v{M+1}")
    a.e(f"v_max_f32 v{M}, v{M}, v{M+1}")
    for r in range(16):
        a.e(f"v_sub_f32 v{CM+r}, 0, v{M}")
        a.e(f"v_sub_f32 v{CF+r}, v{CF+r}, v{M}")
        a.e(f"v_sub_f32 v{CD+r}, v{CD+r}, v{M}")
    a.e("s_waitcnt vmcnt(0)")
    for t in range(9):
        if t < 8:
            a.e(f"s_cmp_lt_u32 s20, {8-t}\ns_cbranch_scc1 L_attnb_p2_{t}")
        c = CF if t == 0 else (CD if t == 8 else CM)
        Sc = S[t % 2]
        a.e(f"v_mfma_f32_32x32x16_bf16 v[{Sc}:{Sc+15}], v[{KR+4*t}:{KR+4*t+3}], v[{Q}:{Q+3}], v[{c}:{c+15}]")
        a.e("s_nop 11")
        for i in range(10): a.e(f"v_exp_f32 v{Sc+i}, v{Sc+i}")
        a.e(f"v_smfmac_f32_32x32x32_bf16 v[{O}:{O+15}], v[{VR+8*t}:{VR+8*t+3}], v[{Sc}:{Sc+7}], v{IDX}")
        for i in range(10, 16): a.e(f"v_exp_f32 v{Sc+i}, v{Sc+i}")
        a.e("s_nop 1")
        a.e(f"v_smfmac_f32_32x32x32_bf16 v[{O}:{O+15}], v[{VR+8*t+4}:{VR+8*t+7}], v[{Sc+8}:{Sc+15}], v{IDX}")
        if t < 8: a.label(f"L_attnb_p2_{t}")
    attn_finish(O, 24)
    kend(L)
    kernels.append((L, 224, 56))

def main(out, nlaunch=None, extra=0):
    launches = [("prep_kernel", 161, 512, 2048)]
    for layer in range(2):
        launches += [("qkva_kernel", 256, 320, STAT_LDS + 8192), ("attna_kernel", 256, 512, 131072), ("oproja_kernel", 256, 256, 32768),
                     ("qkvb_kernel", 256, 512, STAT_LDS + 8192), ("attnb_kernel", 256, 512, 0),
                     ("oprojb_kernel" if layer == 0 else "oprojl_kernel", 256, 256, 32768)]
    if nlaunch: launches = launches[:nlaunch]
    launches += [("oprojl_kernel", 256, 256, 32768)] * extra
    hdr = open("cdna_kernels/" + NAME + ".s.ref").read().split("\n")
    head = [l for l in hdr if l.startswith(";") and "@launch" not in l and "Override" not in l and "grid=ceil" not in l]
    s = "\n".join(head) + "\n"
    for k, g, b, l in launches:
        s += f"; @launch kernel={k} grid=({g},1,1) block=({b},1,1) lds={l}\n"
    s += '.amdgcn_target "amdgcn-amd-amdhsa--gfx950"\n.text\n'
    gen_prep(); gen_qkva(); gen_attna(); gen_oproj(); gen_qkvb(); gen_attnb()
    a.label("L_text_end")
    body = a.text()
    for p in check(body): print("HAZARD", p)
    s += body
    s += '.section .rodata,"a"\n'
    used = {k for k, *_ in launches}
    for lab, vg, sg in kernels:
        if lab not in used: continue
        s += f""".p2align 6
.amdhsa_kernel {lab}
  .amdhsa_next_free_vgpr {vg}
  .amdhsa_next_free_sgpr {sg}
  .amdhsa_accum_offset {vg}
  .amdhsa_group_segment_fixed_size 0
  .amdhsa_kernarg_size 88
  .amdhsa_user_sgpr_count 2
  .amdhsa_user_sgpr_kernarg_segment_ptr 1
  .amdhsa_system_sgpr_workgroup_id_x 1
.end_amdhsa_kernel
"""
    open(out, "w").write(s)

if __name__ == "__main__":
    out = sys.argv[1] if len(sys.argv) > 1 else "cdna_kernels/" + NAME + ".s"
    main(out, extra=int(sys.argv[2]) if len(sys.argv) > 2 else 0)
```

```python
import sys, math, struct
from asmlib import *

NAME = "interleave_layers__grouped_kv_mqa__sliding_block__prompt"
WF = 0x000000
T_Q, T_KV, T_OA, T_B, T_OB, T_N = 0, 16, 17, 33, 81, 97
CS = 0x310000
STP = 0x340000
RB = 0x400000; RSTRIDE = 0xD00000
X0, _unused, OBUF, KVB, KVA = [RB + o for o in (0, 0x200000, 0x400000, 0x800000, 0xC00000)]
FL = 0x2800000; FSTR = 4352
F_ALL, F_KV = 0, 32
MBX = 0x2900000
S_FAST, S_MB, S_PH = 56, 57, 58
WS_SIZE = 0x3000000
STAMP = 0x3000000
QSCALE = 0.25 * math.log2(math.e)
def f32(x): return "0x%08x" % struct.unpack("<I", struct.pack("<f", x))[0]
ONES2 = "0x3f803f80"
NEGBIG = f32(-1e30)
L_KVB = 0
L_WV = 0
L_WKV = 81920
L_XB = 81920
L_CNT = 163588
L_XH = 114688
L_Q = 147456
L_STAT = 155648
L_RED = 139264
L_FLAG = 163584
LDS_SIZE = 163840

kernels = []
a = Asm()
INSTR = False
OPT = set()
NMARK = 28
def stamp_start():
    if INSTR:
        a.e("s_load_dwordx2 s[88:89], s[0:1], 80\nv_lshrrev_b32 v1, 6, v0\ns_nop 0\nv_readfirstlane_b32 s94, v1")
        a.e("s_lshl_b32 s95, s2, 12\ns_lshl_b32 s94, s94, 9\ns_add_u32 s92, s94, s95")
        a.e(f"s_add_u32 s92, s92, {STAMP}\ns_mov_b32 s90, 0x4000000\ns_mov_b32 s91, 0x20000")
        a.e("s_waitcnt lgkmcnt(0)")
        mark()
def mark():
    if INSTR:
        a.e("s_memrealtime s[84:85]\ns_memtime s[86:87]\ns_mov_b64 s[96:97], exec\ns_mov_b64 exec, 1\ns_waitcnt lgkmcnt(0)")
        a.e("v_mov_b32 v126, s84\nv_mov_b32 v127, s86\nv_mov_b32 v125, 0")
        a.e("buffer_store_dwordx2 v[126:127], v125, s[88:91], s92 offen")
        a.e("s_add_u32 s92, s92, 8\ns_mov_b64 exec, s[96:97]")

def srd(d, b, size):
    a.e(f"s_mov_b32 s{d}, s{b}\ns_mov_b32 s{d+1}, s{b+1}\ns_mov_b32 s{d+2}, {size:#x}\ns_mov_b32 s{d+3}, 0x20000")
def X(r, n): return f"v[{r}:{r+n-1}]"

def gen_prep():
    L = "prep_kernel"
    a.raw(f".globl {L}\n.p2align 8\n.type {L},@function")
    a.label(L)
    a.e("s_cmp_ge_u32 s2, 162\ns_cbranch_scc1 L_end_prep")
    a.e("s_load_dwordx16 s[16:31], s[0:1], 0")
    a.e("s_load_dwordx2 s[4:5], s[0:1], 80")
    a.e("s_getpc_b64 s[6:7]")
    a.label("L_pc0")
    a.e("v_lshlrev_b32 v1, 6, v0")
    a.e("v_min_u32 v1, L_text_end-L_pc0-4, v1")
    a.e("global_load_dword v60, v1, s[6:7]")
    a.e("v_and_b32 v1, 63, v0")
    a.e("v_lshrrev_b32 v2, 6, v0")
    a.e("v_and_b32 v3, 31, v0")
    a.e("v_readfirstlane_b32 s3, v2")
    a.e("v_bfe_u32 v4, v0, 5, 1")
    a.e("v_lshlrev_b32 v5, 4, v1")
    a.e("s_waitcnt lgkmcnt(0)")
    srd(8, 4, WS_SIZE)
    a.e("s_cmp_eq_u32 s2, 161\ns_cbranch_scc1 L_prep_flags")
    a.e("s_cmp_ge_u32 s2, 97\ns_cbranch_scc1 L_prep_x")
    a.e("s_mov_b32 s15, 0x20000")
    a.e("s_mov_b32 s12, s18\ns_mov_b32 s13, s19\ns_mov_b32 s14, 0x80000\ns_mov_b32 s33, 1024\ns_lshl_b32 s34, s2, 5")
    a.e(f"s_cmp_lt_u32 s2, {T_KV}\ns_cbranch_scc1 L_prep_w")
    a.e("s_mov_b32 s12, s20\ns_mov_b32 s13, s21\ns_mov_b32 s14, 0x4000\ns_mov_b32 s33, 32\ns_mov_b32 s34, 0")
    a.e(f"s_cmp_lt_u32 s2, {T_OA}\ns_cbranch_scc1 L_prep_w")
    a.e(f"s_mov_b32 s12, s24\ns_mov_b32 s13, s25\ns_mov_b32 s14, 0x80000\ns_mov_b32 s33, 1024\ns_sub_u32 s34, s2, {T_OA}\ns_lshl_b32 s34, s34, 5")
    a.e(f"s_cmp_lt_u32 s2, {T_B}\ns_cbranch_scc1 L_prep_w")
    a.e(f"s_mov_b32 s12, s28\ns_mov_b32 s13, s29\ns_mov_b32 s14, 0x180000\ns_mov_b32 s33, 3072\ns_sub_u32 s34, s2, {T_B}\ns_lshl_b32 s34, s34, 5")
    a.e(f"s_cmp_lt_u32 s2, {T_OB}\ns_cbranch_scc1 L_prep_w")
    a.e(f"s_mov_b32 s12, s30\ns_mov_b32 s13, s31\ns_mov_b32 s14, 0x80000\ns_mov_b32 s33, 1024\ns_sub_u32 s34, s2, {T_OB}\ns_lshl_b32 s34, s34, 5")
    a.label("L_prep_w")
    a.e("v_lshlrev_b32 v6, 2, v4")
    a.e("v_mul_lo_u32 v6, v6, s33")
    a.e("v_add_u32 v7, s34, v3")
    a.e(f"s_cmp_lg_u32 s2, {T_KV}\ns_cbranch_scc1 L_prep_notkv")
    a.e("v_and_b32 v7, 15, v3")
    a.e("s_mov_b32 exec_lo, 0xffff\ns_mov_b32 exec_hi, 0xffff")
    a.label("L_prep_notkv")
    a.e("s_mov_b64 s[36:37], exec\ns_mov_b64 exec, -1")
    a.e("v_lshl_add_u32 v6, v7, 1, v6")
    a.e("s_mov_b64 exec, s[36:37]")
    a.e("s_lshl_b32 s35, s3, 6")
    a.e("s_mul_i32 s35, s35, s33")
    def loads(srd_):
        for ks in range(4):
            for j in range(8):
                k = 16 * ks + 8 * (j // 4) + j % 4
                a.e(f"s_mul_i32 s38, s33, {k}\ns_add_u32 s38, s38, s35")
                a.e(f"buffer_load_ushort v{16+ks*8+j}, v6, s[{srd_}:{srd_+3}], s38 offen")
    loads(12)
    a.e(f"s_cmp_lg_u32 s2, {T_KV}\ns_cbranch_scc1 L_prep_packw")
    a.e("s_mov_b32 s40, s22\ns_mov_b32 s41, s23\ns_mov_b32 s42, 0x4000\ns_mov_b32 s43, 0x20000")
    a.e("s_mov_b32 exec_lo, 0xffff0000\ns_mov_b32 exec_hi, 0xffff0000")
    loads(40)
    a.label("L_prep_packw")
    a.e("s_mov_b64 exec, -1")
    a.e("s_waitcnt vmcnt(0)")
    for q in range(16):
        a.e(f"v_lshl_or_b32 v{16+q}, v{16+2*q+1}, 16, v{16+2*q}")
    a.e("v_mov_b32 v8, 0")
    a.e(f"s_mov_b32 s39, {ONES2}")
    for q in range(16):
        a.e(f"v_dot2_f32_bf16 v8, v{16+q}, s39, v8")
    a.e("s_lshl_b32 s38, s2, 15\ns_lshl_b32 s35, s3, 12\ns_add_u32 s38, s38, s35")
    for ks in range(4):
        a.e(f"buffer_store_dwordx4 v[{16+4*ks}:{19+4*ks}], v5, s[8:11], s38 offen offset:{ks*1024}")
    a.e("v_lshlrev_b32 v9, 4, v3")
    a.e("v_lshl_add_u32 v9, v2, 1, v9")
    a.e("v_add_lshl_u32 v9, v9, v4, 2")
    a.e("ds_write_b32 v9, v8")
    a.e("s_waitcnt lgkmcnt(0)\ns_barrier")
    a.e("s_cmp_lg_u32 s3, 0\ns_cbranch_scc1 L_end_prep")
    a.e("v_lshlrev_b32 v9, 6, v3")
    for q in range(4):
        a.e(f"ds_read_b128 v[{32+4*q}:{35+4*q}], v9 offset:{16*q}")
    a.e("s_waitcnt lgkmcnt(0)")
    for q in range(1, 16):
        a.e(f"v_add_f32 v32, v32, v{32+q}")
    a.e(f"s_lshl_b32 s38, s2, 7\ns_add_u32 s38, s38, {CS}")
    a.e("v_lshlrev_b32 v9, 2, v3")
    a.e("buffer_store_dword v32, v9, s[8:11], s38 offen")
    a.e("s_endpgm")
    a.label("L_prep_x")
    srd(12, 16, 0x200000)
    a.e("s_sub_u32 s34, s2, 97")
    a.e("v_lshlrev_b32 v6, 10, v3")
    a.e("v_lshl_add_u32 v6, v4, 3, v6")
    a.e("s_lshl_b32 s35, s34, 15\ns_lshl_b32 s38, s3, 7\ns_add_u32 s38, s38, s35")
    for ks in range(4):
        a.e(f"buffer_load_dwordx2 v[{16+4*ks}:{17+4*ks}], v6, s[12:15], s38 offen offset:{ks*32}")
        a.e(f"buffer_load_dwordx2 v[{18+4*ks}:{19+4*ks}], v6, s[12:15], s38 offen offset:{ks*32+16}")
    a.e(f"s_lshl_b32 s38, s3, 12\ns_add_u32 s38, s38, s35\ns_add_u32 s38, s38, {X0}")
    a.e("s_waitcnt vmcnt(0)")
    for ks in range(4):
        a.e(f"buffer_store_dwordx4 v[{16+4*ks}:{19+4*ks}], v5, s[8:11], s38 offen offset:{ks*1024}")
    a.e(f"s_mov_b32 s39, {ONES2}")
    for q in range(4): a.e(f"v_mov_b32 v{32+q}, 0")
    for q in range(8):
        for c in range(2):
            a.e(f"v_dot2_f32_bf16 v{32+2*c}, v{16+8*c+q}, s39, v{32+2*c}")
            a.e(f"v_dot2_f32_bf16 v{33+2*c}, v{16+8*c+q}, v{16+8*c+q}, v{33+2*c}")
    a.e(f"s_lshl_b32 s38, s34, 12\ns_lshl_b32 s35, s3, 9\ns_add_u32 s38, s38, s35\ns_add_u32 s38, s38, {STP}")
    a.e("v_lshlrev_b32 v6, 2, v1")
    a.e("v_permlane32_swap_b32 v32, v33\nv_permlane32_swap_b32 v34, v35")
    a.e("v_add_f32 v32, v32, v33\nv_add_f32 v34, v34, v35")
    a.e("buffer_store_dword v32, v6, s[8:11], s38 offen\nbuffer_store_dword v34, v6, s[8:11], s38 offen offset:256")
    a.e("s_endpgm")
    a.label("L_prep_flags")
    a.e(f"v_mul_u32_u24 v6, {FSTR}, v0\nv_mov_b32 v7, 0")
    a.e(f"s_mov_b32 s38, {FL}\nv_min_u32 v6, {63*FSTR}, v6")
    a.e("buffer_store_dword v7, v6, s[8:11], s38 offen")
    a.e("v_lshlrev_b32 v6, 4, v0\nv_mov_b32 v8, 0\nv_mov_b32 v9, 0\nv_mov_b32 v10, 0\nv_mov_b32 v11, 0")
    for q in range(16):
        a.e(f"s_mov_b32 s38, {MBX + q*8192}")
        a.e("buffer_store_dwordx4 v[8:11], v6, s[8:11], s38 offen")
    a.label("L_end_prep")
    a.e("s_endpgm")
    kernels.append((L, 64, 48))

V_L16, V_I, V_H, V_T0 = 1, 2, 3, 4
XRES = 8
ACC, XW, WW, RES = 16, 48, 80, 96
XA, WA, MEAN0, RSTD0, MEAN1, RSTD1, VADR = 112, 113, 114, 115, 116, 117, 118
ST = 80
WR = 128
S_W, S_RB, S_G, S_RT, S_CB, S_IT, S_BUF = 3, 16, 17, 18, 19, 20, 21
S_WL = 46
S_PF = 48
uid = [0]
def lab(p):
    uid[0] += 1
    return f"L_{p}_{uid[0]}"

def dma(n1k, s_src, s_m0, flag="sc1"):
    for c in range(n1k):
        if c % 4 == 0:
            if c: a.e(f"s_add_u32 s{s_src}, s{s_src}, 4096\ns_add_u32 s{s_m0}, s{s_m0}, 4096")
            a.e(f"s_mov_b32 m0, s{s_m0}\ns_nop 0")
        a.e(f"buffer_load_dwordx4 v{V_L16}, s[8:11], s{s_src} offen offset:{(c%4)*1024} {flag} lds")

def dma_loop(n4k, s_src, s_m0, flag="sc1"):
    L = lab("dma")
    a.e(f"s_mov_b32 s41, {n4k}")
    a.label(L)
    a.e(f"s_mov_b32 m0, s{s_m0}\ns_add_u32 s{s_m0}, s{s_m0}, 4096")
    for c in range(4):
        a.e(f"buffer_load_dwordx4 v{V_L16}, s[8:11], s{s_src} offen offset:{c*1024} {flag} lds")
    a.e(f"s_add_u32 s{s_src}, s{s_src}, 4096\ns_sub_u32 s41, s41, 1\ns_cmp_lg_u32 s41, 0\ns_cbranch_scc1 {L}")

def pf_setup(s_tile):
    a.e(f"s_lshl_b32 s{S_PF}, s{s_tile}, 15")
    for g in range(1, 8): a.e(f"s_add_u32 s{S_PF+g}, s{S_PF}, {g*4096}")
def pf(i):
    a.e(f"buffer_load_dwordx4 {X(WR+4*i,4)}, v{V_L16}, s[8:11], s{S_PF+i//4} offen offset:{(i%4)*1024}")

def gemm(orient, nrt, wsrc, xa, hooks={}):
    nbuf = 4 if (nrt == 2 or wsrc == "lds") else 8
    per = nrt + (1 if wsrc == "lds" else 0)
    def xreg(s, r): return XW + 4 * ((s % nbuf) * nrt + r)
    def wreg(s): return WR + 4 * s if wsrc == "reg" else WW + 4 * (s % nbuf)
    def rd(s):
        if wsrc == "lds": a.e(f"ds_read_b128 {X(wreg(s),4)}, v{WA} offset:{s*1024}")
        for r in range(nrt):
            a.e(f"ds_read_b128 {X(xreg(s,r),4)}, v{xa} offset:{s*1024 + r*32768}")
    pre = nbuf - 1
    for s in range(pre): rd(s)
    extra = 0
    for s in range(32):
        if s + pre < 32: rd(s + pre)
        outstanding = (min(32, s + pre + 1) - (s + 1)) * per
        a.e(f"s_waitcnt lgkmcnt({outstanding})")
        for r in range(nrt):
            w = X(wreg(s), 4); x = X(xreg(s,r), 4); acc = X(ACC+16*r, 16)
            c = "0" if s == 0 else acc
            if orient == "T": a.e(f"v_mfma_f32_32x32x16_bf16 {acc}, {w}, {x}, {c}")
            else: a.e(f"v_mfma_f32_32x32x16_bf16 {acc}, {x}, {w}, {c}")
        if s in hooks: hooks[s]()

def stats_wave(s_rt, s_r):
    for c in range(16):
        a.e(f"buffer_load_dword v{XW+c}, v{V_T0+2}, s[8:11], s{s_rt} offen offset:{c*256} sc1")
    a.e(f"v_lshlrev_b32 v{V_T0}, 2, v{V_I}")
    if s_r is None: a.e(f"s_mov_b32 s38, {L_STAT}")
    else: a.e(f"s_lshl_b32 s38, s{s_r}, 8\ns_add_u32 s38, s38, {L_STAT}")
    a.e(f"v_add_u32 v{V_T0}, s38, v{V_T0}")
    a.e("s_waitcnt vmcnt(0)")
    for st in (8, 4, 2, 1):
        for c in range(st): a.e(f"v_add_f32 v{XW+c}, v{XW+c}, v{XW+c+st}")
    a.e(f"v_mul_f32 v{XW}, {f32(1/512)}, v{XW}")
    a.e(f"v_mov_b32 v{XW+1}, v{XW}\ns_nop 1")
    a.e(f"v_permlane32_swap_b32 v{XW}, v{XW+1}")
    a.e(f"v_fma_f32 v{XW+1}, -v{XW}, v{XW}, v{XW+1}")
    a.e(f"v_max_f32 v{XW+1}, 0, v{XW+1}")
    a.e(f"v_add_f32 v{XW+1}, {f32(1e-5)}, v{XW+1}")
    a.e(f"v_rsq_f32 v{XW+1}, v{XW+1}")
    a.e(f"ds_write_b32 v{V_T0}, v{XW}")
    a.e(f"ds_write_b32 v{V_T0}, v{XW+1} offset:128")
    a.e("s_waitcnt lgkmcnt(0)")

def stats_read_T(nrt):
    a.e(f"v_lshlrev_b32 v{V_T0}, 2, v{V_I}\nv_add_u32 v{V_T0}, {L_STAT}, v{V_T0}")
    for r in range(nrt):
        a.e(f"ds_read2_b32 {X(MEAN0+2*r,2)}, v{V_T0} offset0:{64*r} offset1:{64*r+32}")

def epi_T(acc, vmean, vrstd, scale=None, n=16):
    if scale: a.e(f"v_mul_f32 v{vrstd}, {scale}, v{vrstd}")
    for r in range(n): a.e(f"v_fma_f32 v{acc+r}, -v{vmean}, v{RES+r}, v{acc+r}")
    for r in range(n): a.e(f"v_mul_f32 v{acc+r}, v{vrstd}, v{acc+r}")
    for q in range(n // 2): a.e(f"v_cvt_pk_bf16_f32 v{acc+q}, v{acc+2*q}, v{acc+2*q+1}")

def epi_N_read(r, bm, br):
    for g in range(4):
        a.e(f"ds_read_b128 {X(bm+4*g,4)}, v{V_T0+2} offset:{256*r+32*g}")
        a.e(f"ds_read_b128 {X(br+4*g,4)}, v{V_T0+2} offset:{256*r+128+32*g}")
def epi_N(acc, bm, br):
    for r in range(16): a.e(f"v_fma_f32 v{acc+r}, -v{bm+r}, v{MEAN0}, v{acc+r}")
    for r in range(16): a.e(f"v_mul_f32 v{acc+r}, v{br+r}, v{acc+r}")
    for q in range(8): a.e(f"v_cvt_pk_bf16_f32 v{acc+q}, v{acc+2*q}, v{acc+2*q+1}")

def cs_loads_T(s_tile):
    a.e(f"s_lshl_b32 s38, s{s_tile}, 7\ns_add_u32 s38, s38, {CS}")
    a.e(f"v_lshlrev_b32 v{V_T0}, 4, v{V_H}")
    for g in range(4):
        a.e(f"buffer_load_dwordx4 {X(RES+4*g,4)}, v{V_T0}, s[8:11], s38 offen offset:{32*g}")
def cs_loads_N(s_tile):
    a.e(f"s_lshl_b32 s38, s{s_tile}, 7\ns_add_u32 s38, s38, {CS}")
    a.e(f"v_lshlrev_b32 v{V_T0}, 2, v{V_I}")
    a.e(f"buffer_load_dword v{MEAN0}, v{V_T0}, s[8:11], s38 offen")
    a.e(f"v_lshlrev_b32 v{V_T0+2}, 4, v{V_H}\nv_add_u32 v{V_T0+2}, {L_STAT}, v{V_T0+2}")

def kperm_addr(vd):
    a.e(f"v_and_b32 v{vd}, 0x330, v{V_L16}")
    a.e(f"v_bfe_u32 v{V_T0+1}, v{V_L16}, 6, 1")
    a.e(f"v_lshl_or_b32 v{vd}, v{V_T0+1}, 7, v{vd}")
    a.e(f"v_bfe_u32 v{V_T0+1}, v{V_L16}, 7, 1")
    a.e(f"v_lshl_or_b32 v{vd}, v{V_T0+1}, 6, v{vd}")
def vfrag_addr(vd):
    a.e(f"v_and_b32 v{vd}, 15, v{V_I}")
    a.e(f"v_lshl_add_u32 v{vd}, v{V_H}, 4, v{vd}")
    a.e(f"v_lshlrev_b32 v{vd}, 4, v{vd}")

def signal_prep(s_idx, base):
    a.e(f"s_add_u32 s37, s{s_idx}, {base}\ns_mul_i32 s37, s37, {FSTR}\ns_add_u32 s37, s37, {FL}")
    a.e(f"v_mov_b32 v{V_T0}, 0\nv_mov_b32 v{V_T0+1}, 1")
def signal_go(ret=False):
    a.e("s_mov_b64 exec, 1")
    a.e(f"buffer_atomic_add v{V_T0+1}, v{V_T0}, s[8:11], s37 offen {'sc0 ' if ret else ''}sc1")
    a.e("s_mov_b64 exec, -1")

def poll(s_first, base, nlanes, lstride, per_iter, s_mask=None):
    L1, L2 = lab("poll"), lab("polled")
    if s_first is None: a.e(f"s_mov_b32 s38, {FL + base*FSTR}")
    else: a.e(f"s_add_u32 s38, s{s_first}, {base}\ns_mul_i32 s38, s38, {FSTR}\ns_add_u32 s38, s38, {FL}")
    a.e(f"v_mul_u32_u24 v{V_T0}, {FSTR*lstride}, v{V_I}")
    if isinstance(per_iter, tuple): a.e(f"s_mov_b32 s39, {per_iter[0]}")
    else: a.e(f"s_add_u32 s39, s{S_IT}, 1\ns_mul_i32 s39, s39, {per_iter}")
    a.e("s_mov_b32 s40, 200000")
    if s_mask is None: a.e(f"s_mov_b64 exec, {(1<<nlanes)-1}")
    else: a.e(f"s_mov_b64 exec, s[{s_mask}:{s_mask+1}]")
    a.label(L1)
    a.e(f"buffer_load_dword v{V_T0+1}, v{V_T0}, s[8:11], s38 offen sc1")
    a.e("s_waitcnt vmcnt(0)")
    a.e(f"v_cmp_gt_u32 vcc, s39, v{V_T0+1}")
    a.e(f"s_cbranch_vccz {L2}")
    a.e(f"s_sleep 1\ns_sub_u32 s40, s40, 1\ns_cmp_lg_u32 s40, 0\ns_cbranch_scc1 {L1}")
    a.label(L2)
    a.e("s_mov_b64 exec, -1")

ST1 = "sc0 sc1"
def tsig_prep(ph, s_par):
    a.e(f"s_lshl_b32 s37, s{S_IT}, 2\ns_add_u32 s37, s37, {ph}\nv_mov_b32 v{V_T0+1}, s37")
    a.e(f"v_lshlrev_b32 v{V_T0}, 9, v{V_I}")
    a.e(f"s_lshl_b32 s37, s{S_RB}, 12\ns_lshl_b32 s44, s{S_G}, 5\ns_add_u32 s37, s37, s44\ns_lshl_b32 s44, s{S_W}, 2\ns_add_u32 s37, s37, s44\ns_add_u32 s37, s37, {MBX}")
    if s_par is None: a.e("s_mov_b64 s[44:45], 0xff")
    else: a.e(f"s_and_b32 s44, s{s_par}, 1\ns_lshl_b32 s44, 0x55, s44\ns_mov_b32 s45, 0")
def dual(fn):
    l1, l2 = lab("ts"), lab("ts")
    a.e(f"s_cmp_eq_u32 s{S_FAST}, 0\ns_cbranch_scc1 {l1}")
    fn("")
    a.e(f"s_branch {l2}")
    a.label(l1)
    fn(ST1)
    a.label(l2)
def tstore(stores):
    def f(fl):
        for st in stores: a.e(st + " " + fl)
    dual(f)
def tstore_sig(stores):
    def f(fl):
        for st in stores: a.e(st + " " + fl)
        a.e("s_waitcnt vmcnt(0)\ns_mov_b64 exec, s[44:45]")
        a.e(f"buffer_store_dword v{V_T0+1}, v{V_T0}, s[8:11], s37 offen {fl}")
        a.e("s_mov_b64 exec, -1")
    dual(f)
def mpoll(off, s_val, s_mask, sleep=1):
    L1, L2 = lab("poll"), lab("polled")
    a.e(f"v_lshrrev_b32 v{V_T0}, 2, v{V_L16}")
    a.e(f"s_mov_b32 s40, 400000\ns_mov_b64 exec, s[{s_mask}:{s_mask+1}]")
    a.label(L1)
    a.e(f"buffer_load_dword v{V_T0+1}, v{V_T0}, s[8:11], s{S_MB} offen offset:{off} sc1")
    a.e("s_waitcnt vmcnt(0)")
    a.e(f"v_cmp_gt_u32 vcc, s{s_val}, v{V_T0+1}")
    a.e(f"s_cbranch_vccz {L2}")
    a.e(f"s_sleep {sleep}\ns_sub_u32 s40, s40, 1\ns_cmp_lg_u32 s40, 0\ns_cbranch_scc1 {L1}")
    a.label(L2)
    a.e("s_mov_b64 exec, -1")
def tpoll(ph, lo_even, lo_odd, dit=0):
    a.e(f"s_lshl_b32 s39, s{S_IT}, 2\ns_add_u32 s39, s39, {ph + 4*dit}")
    a.e(f"s_bitcmp1_b32 s{S_G}, 0\ns_mov_b32 s44, {lo_even:#x}\ns_cselect_b32 s44, {lo_odd:#x}, s44\ns_mov_b32 s45, s44")
    mpoll(0, 39, 44)
def bar(): a.e("s_barrier")

def phase_qkva():
    a.c("================ qkvA")
    LL, LE, LB = lab("qa_L"), lab("qa_end"), lab("qa_b1")
    a.e(f"v_add_u32 v{XA}, {L_XH}, v{V_L16}")
    a.e(f"s_cmp_lt_u32 s{S_W}, 4\ns_cbranch_scc1 {LL}")
    a.e(f"s_lshl_b32 s24, s{S_CB}, 2\ns_add_u32 s24, s24, s{S_WL}")
    cs_loads_T(24)
    a.e(f"s_lshl_b32 s22, s{S_RT}, 15\ns_lshl_b32 s23, s{S_WL}, 13\ns_add_u32 s22, s22, s23\ns_add_u32 s22, s22, {X0}\ns_add_u32 s23, s23, {L_XH}")
    sk = lab("qa_nopoll")
    a.e(f"s_cmp_eq_u32 s{S_IT}, 0\ns_cbranch_scc1 {sk}")
    tpoll(0, 0x000f000f, 0x0f000f00)
    a.label(sk)
    dma(8, 22, 23)
    mark()
    a.e("s_waitcnt vmcnt(0)\ns_barrier")
    mark()
    stats_read_T(1)
    gemm("T", 1, "reg", XA)
    a.e(f"s_lshl_b32 s22, s{S_WL}, 11\ns_add_u32 s22, s22, {L_Q}")
    a.e(f"v_add_u32 v{VADR}, s22, v{V_L16}")
    a.e("s_nop 8")
    epi_T(ACC, MEAN0, RSTD0, f32(QSCALE))
    a.e(f"ds_write_b128 v{VADR}, {X(ACC,4)}")
    a.e(f"ds_write_b128 v{VADR}, {X(ACC+4,4)} offset:1024")
    a.e(f"s_branch {LE}")
    a.label(LL)
    LK, LV, LST, LS = lab("qa_k"), lab("qa_v"), lab("qa_st"), lab("qa_sig")
    a.e(f"s_cmp_eq_u32 s{S_W}, 1\ns_cbranch_scc1 {LST}")
    a.e(f"s_lshl_b32 s24, s{S_W}, 2\ns_add_u32 s24, s24, s{S_CB}")
    a.e(f"s_mov_b32 s25, {T_KV}")
    a.e(f"v_add_u32 v{WA}, {L_WKV}, v{V_L16}")
    a.e(f"s_lshr_b32 s26, s{S_RT}, 3\ns_lshl_b32 s22, s26, 14\ns_and_b32 s23, s{S_RT}, 3\ns_lshl_b32 s23, s23, 12\ns_add_u32 s22, s22, s23")
    a.e(f"s_and_b32 s23, s{S_RT}, 4\ns_lshl_b32 s23, s23, 9\ns_add_u32 s22, s22, s23\ns_add_u32 s22, s22, s{S_BUF}\ns_add_u32 s22, s22, {KVA}")
    a.e(f"s_cmp_eq_u32 s24, 0\ns_cbranch_scc1 {LK}")
    a.e(f"s_cmp_eq_u32 s24, 1\ns_cbranch_scc1 {LV}")
    mark()
    a.e("s_waitcnt vmcnt(0)\ns_barrier")
    mark()
    a.e(f"s_branch {LE}")
    a.label(LST)
    a.e(f"s_lshl_b32 s24, s{S_RT}, 12\ns_add_u32 s24, s24, {STP}\nv_lshrrev_b32 v{V_T0+2}, 2, v{V_L16}")
    sk = lab("qa_nopoll")
    a.e(f"s_cmp_eq_u32 s{S_IT}, 0\ns_cbranch_scc1 {sk}")
    tpoll(0, 0x000f000f, 0x0f000f00)
    a.label(sk)
    stats_wave(24, None)
    mark()
    a.e("s_waitcnt vmcnt(0)\ns_barrier")
    mark()
    a.e(f"s_branch {LE}")
    a.label(LK)
    cs_loads_T(25)
    kperm_addr(VADR)
    mark()
    a.e("s_waitcnt vmcnt(0)\ns_barrier")
    mark()
    a.e("s_setprio 2")
    stats_read_T(1)
    gemm("T", 1, "lds", XA)
    signal_prep(26, F_KV)
    a.e("s_nop 6")
    epi_T(ACC, MEAN0, RSTD0, None, 8)
    a.e(f"buffer_store_dwordx4 {X(ACC,4)}, v{VADR}, s[8:11], s22 offen {ST1}")
    a.e(f"s_branch {LS}")
    a.label(LV)
    cs_loads_N(25)
    vfrag_addr(VADR)
    mark()
    a.e("s_waitcnt vmcnt(0)\ns_barrier")
    mark()
    a.e("s_setprio 2")
    epi_N_read(0, 32, 64)
    gemm("N", 1, "lds", XA)
    signal_prep(26, F_KV)
    a.e("s_nop 6")
    epi_N(ACC, 32, 64)
    a.e("s_mov_b32 exec_lo, 0xffff0000\ns_mov_b32 exec_hi, 0xffff0000")
    a.e(f"buffer_store_dwordx4 {X(ACC,4)}, v{VADR}, s[8:11], s22 offen offset:1024 {ST1}")
    a.e(f"buffer_store_dwordx4 {X(ACC+4,4)}, v{VADR}, s[8:11], s22 offen offset:1536 {ST1}")
    a.e("s_mov_b64 exec, -1")
    a.label(LS)
    a.e(f"v_mul_u32_u24 v{V_T0+2}, {FSTR}, v{V_I}\nv_mov_b32 v{V_T0+3}, 1")
    a.e(f"s_lshl_b32 s24, s{S_IT}, 4\ns_add_u32 s24, s24, 15\ns_mov_b32 s25, {FL + F_ALL*FSTR}")
    a.e("s_setprio 0\ns_waitcnt vmcnt(0)")
    signal_go(ret=True)
    a.e("s_waitcnt vmcnt(0)")
    a.e(f"v_readfirstlane_b32 s23, v{V_T0+1}")
    a.e("s_nop 3")
    a.e(f"s_cmp_lg_u32 s23, s24\ns_cbranch_scc1 {LE}")
    a.e("s_mov_b32 exec_hi, 0")
    a.e(f"buffer_atomic_add v{V_T0+3}, v{V_T0+2}, s[8:11], s25 offen sc1")
    a.e("s_mov_b64 exec, -1")
    a.label(LE)
    mark()

Q0, Q1, KBUF, VBUF, S0, S1, O0, O1, IDX, VK, VV, M = 16, 20, (24, 28), (32, 40), 48, 64, 80, 96, 112, 113, 114, 116
VK2, VV2 = 120, 121
def smf(O, V, S): a.e(f"v_smfmac_f32_32x32x32_bf16 {X(O,16)}, {X(V,4)}, {X(S,8)}, v{IDX}")
def smm(S, K, Q, C="0"): a.e(f"v_mfma_f32_32x32x16_bf16 {X(S,16)}, {X(K,4)}, {X(Q,4)}, {C}")
def attn_init(nO):
    a.e(f"v_mov_b32 v{IDX}, 0xdddddddd")
    for r in range(16): a.e(f"v_mov_b32 v{VBUF[0]+r}, 0")
    a.e("s_mov_b32 exec_lo, 0x110000\ns_mov_b32 exec_hi, 0x110000")
    for r in range(16): a.e(f"v_mov_b32 v{VBUF[0]+r}, {ONES2}")
    a.e("s_mov_b64 exec, -1")
    for r in range(16 * nO): a.e(f"v_mov_b32 v{O0+r}, 0")
    a.e("s_mov_b32 s30, 0xffff\ns_mov_b32 s31, 0xffff")
LO_OK, HI_OK = f32(2.0 ** -60), f32(2.0 ** 60)
def range_check(l, sdst):
    a.e(f"v_cmp_nle_f32 vcc, {LO_OK}, v{l}")
    a.e(f"s_mov_b64 s[{sdst}:{sdst+1}], vcc")
    a.e(f"v_cmp_nge_f32 vcc, {HI_OK}, v{l}")
    a.e(f"s_or_b64 s[{sdst}:{sdst+1}], s[{sdst}:{sdst+1}], vcc")
def attn_store(O, s_off):
    a.e(f"v_rcp_f32 v{O+8}, v{O+8}")
    a.e("s_nop 0")
    for r in range(8): a.e(f"v_mul_f32 v{O+r}, v{O+8}, v{O+r}")
    for q in range(4): a.e(f"v_cvt_pk_bf16_f32 v{O+q}, v{O+2*q}, v{O+2*q+1}")
    tstore_sig([f"buffer_store_dwordx4 {X(O,4)}, v{V_L16}, s[8:11], s{s_off} offen"])

deferred = []

def qkvb_tile_H(sd):
    a.e(f"s_lshr_b32 s{sd}, s{S_WL}, 1\ns_lshl_b32 s{sd}, s{sd}, 4\ns_and_b32 s23, s{S_WL}, 1\ns_add_u32 s{sd}, s{sd}, s23")
    a.e(f"s_lshl_b32 s23, s{S_G}, 1\ns_add_u32 s{sd}, s{sd}, s23\ns_add_u32 s{sd}, s{sd}, {T_B}")

def phase_attna():
    a.c("================ attnA")
    LH, LJ = lab("aa_H"), lab("aa_j")
    a.e("s_waitcnt lgkmcnt(0)")
    attn_init(2)
    for r in range(8, 16): a.e(f"v_mov_b32 v{S1+r}, 0")
    a.e(f"v_mov_b32 v{V_T0}, {L_FLAG}\nv_mov_b32 v{V_T0+2}, 0\nv_mov_b32 v{V_T0+3}, 0")
    a.e(f"ds_write_b64 v{V_T0}, {X(V_T0+2,2)}")
    a.e(f"s_lshr_b32 s25, s{S_W}, 2\ns_lshl_b32 s26, s{S_WL}, 1\ns_add_u32 s27, s26, s25\ns_xor_b32 s28, s27, 1")
    a.e("s_lshl_b32 s22, s25, 11")
    a.e(f"v_add_u32 v{VK}, s22, v{V_L16}")
    vfrag_addr(VV)
    a.e(f"s_add_u32 s22, s22, 1024\nv_add_u32 v{VV}, s22, v{VV}")
    a.e(f"s_lshl_b32 s29, s{S_CB}, 3\ns_add_u32 s29, s29, s27\ns_lshl_b32 s29, s29, 10\ns_lshl_b32 s22, s{S_RT}, 15\ns_add_u32 s29, s29, s22\ns_add_u32 s29, s29, {OBUF}")
    lx = lab("aa_xcc")
    a.e(f"s_cmp_lg_u32 s{S_IT}, 0\ns_cbranch_scc1 {lx}")
    a.e(f"buffer_load_dwordx4 {X(S0,4)}, v{V_L16}, s[8:11], s29 offen")
    a.e("s_mov_b32 s39, 1\ns_mov_b64 s[44:45], 0xff")
    mpoll(256, 39, 44)
    a.e(f"v_readfirstlane_b32 s22, v{V_T0+1}")
    a.e("s_mov_b64 exec, 0xff\ns_nop 0")
    a.e(f"v_cmp_ne_u32 vcc, s22, v{V_T0+1}")
    a.e("s_mov_b64 exec, -1")
    a.e(f"s_cmp_eq_u64 vcc, 0\ns_cselect_b32 s{S_FAST}, 1, 0")
    if "slowsync" in OPT: a.e(f"s_mov_b32 s{S_FAST}, 0")
    a.label(lx)
    a.e(f"s_cmp_ge_u32 s{S_W}, 4\ns_cbranch_scc1 {LH}")
    a.e(f"s_lshl_b32 s24, s{S_CB}, 2\ns_add_u32 s24, s24, s{S_WL}\ns_add_u32 s24, s24, {T_OA}")
    a.e(f"s_cmp_lt_u32 s{S_W}, 2\ns_cbranch_scc1 {LJ}")
    a.e(f"s_and_b32 s23, s{S_W}, 1\ns_lshl_b32 s23, s23, 14\ns_add_u32 s22, s23, {KVA}\ns_add_u32 s22, s22, s{S_BUF}")
    poll(S_RB, F_ALL, 1, 1, 8)
    dma_loop(4, 22, 23)
    a.e(f"s_branch {LJ}")
    a.label(LH)
    qkvb_tile_H(24)
    a.label(LJ)
    pf_setup(24)
    a.e(f"s_lshl_b32 s22, s27, 10\ns_add_u32 s22, s22, {L_Q}\ns_lshl_b32 s23, s28, 10\ns_add_u32 s23, s23, {L_Q}")
    a.e(f"v_add_u32 v{V_T0}, s22, v{V_L16}\nv_add_u32 v{V_T0+1}, s23, v{V_L16}")
    a.e(f"s_mul_i32 s43, s{S_W}, 6144\ns_add_u32 s43, s43, 32768\ns_add_u32 s42, s43, {KVA}\ns_add_u32 s42, s42, s{S_BUF}")
    a.e("s_getpc_b64 s[32:33]")
    pcl = lab("aa_pc")
    a.label(pcl)
    a.e(f"s_add_u32 s32, s32, L_aa_body-{pcl}\ns_addc_u32 s33, s33, 0")
    mark()
    a.e("s_waitcnt vmcnt(0) lgkmcnt(0)\ns_barrier")
    mark()
    a.e(f"ds_read_b128 {X(Q0,4)}, v{V_T0}\nds_read_b128 {X(KBUF[0],4)}, v{VK}\nds_read_b128 {X(Q1,4)}, v{V_T0+1}")
    a.e(f"ds_read_b128 {X(KBUF[1],4)}, v{VK} offset:4096")
    a.e("s_mov_b64 exec, s[30:31]")
    a.e(f"ds_read_b128 {X(VBUF[0],4)}, v{VV}")
    a.e(f"ds_read_b128 {X(VBUF[0]+4,4)}, v{VV} offset:512")
    a.e("s_mov_b64 exec, -1")
    def dma6():
        a.e("s_mov_b32 m0, s43\ns_add_u32 s44, s42, 4096\ns_add_u32 s45, s43, 4096")
        for c in range(4): a.e(f"buffer_load_dwordx4 v{V_L16}, s[8:11], s42 offen offset:{c*1024} sc1 lds")
        a.e("s_mov_b32 m0, s45\ns_add_u32 s42, s42, 49152\ns_add_u32 s43, s43, 49152")
        for c in range(2): a.e(f"buffer_load_dwordx4 v{V_L16}, s[8:11], s44 offen offset:{c*1024} sc1 lds")
    a.e("s_waitcnt lgkmcnt(4)")
    smm(S0, KBUF[0], Q0)
    prio = [3, 3, 3, 3, 2, 2, 1, 0]
    pfs = {2: range(0, 8), 3: range(8, 16), 5: range(16, 24), 6: range(24, 32)}
    def wv_dma():
        a.e(f"s_lshl_b32 s42, s{S_G}, 16\ns_lshl_b32 s43, s{S_W}, 13\ns_add_u32 s42, s42, s43\ns_add_u32 s42, s42, {(T_B+32)*32768}\ns_add_u32 s43, s43, {L_WV}")
        dma(8, 42, 43, flag="")
    for c in range(8):
        if c in (1, 4): a.e("s_waitcnt vmcnt(0)\ns_barrier")
        if c in (0, 1): dma6()
        if c == 4: wv_dma()
        for i in pfs.get(c, []): pf(i)
        if "noprio" not in OPT and (c == 0 or prio[c] != prio[c-1]): a.e(f"s_setprio {prio[c]}")
        a.e("s_swappc_b64 s[34:35], s[32:33]")
    smf(O1, VBUF[1] + 4, S1 + 8)
    a.e("s_mov_b32 s36, 0")
    a.label("L_aa_xchg")
    mark()
    a.e(f"s_mul_i32 s22, s{S_W}, 2560\ns_add_u32 s22, s22, {L_RED}\ns_xor_b32 s23, s{S_W}, 4\ns_mul_i32 s23, s23, 2560\ns_add_u32 s23, s23, {L_RED}")
    a.e(f"v_add_u32 v{V_T0}, s22, v{V_L16}\nv_add_u32 v{V_T0+1}, s23, v{V_L16}")
    a.e(f"v_lshrrev_b32 v{V_T0+2}, 2, v{V_L16}")
    a.e(f"v_add_u32 v{V_T0+3}, s23, v{V_T0+2}\nv_add_u32 v{V_T0+2}, s22, v{V_T0+2}")
    range_check(O0 + 8, 40)
    a.e("s_nop 1")
    a.e(f"ds_write_b128 v{V_T0}, {X(O1,4)}\nds_write_b128 v{V_T0}, {X(O1+4,4)} offset:1024\nds_write_b32 v{V_T0+2}, v{O1+8} offset:2048")
    range_check(O1 + 8, 42)
    a.e("s_or_b64 s[40:41], s[40:41], s[42:43]")
    ok = lab("aa_ok")
    a.e(f"v_mov_b32 v{M}, {L_FLAG}")
    a.e(f"s_cbranch_scc0 {ok}")
    a.e(f"ds_write_b32 v{M}, v{M}")
    a.label(ok)
    a.e("s_waitcnt lgkmcnt(0)\ns_barrier")
    a.e(f"ds_read_b128 {X(S0,4)}, v{V_T0+1}\nds_read_b128 {X(S0+4,4)}, v{V_T0+1} offset:1024\nds_read_b32 v{S0+8}, v{V_T0+3} offset:2048\nds_read_b32 v{M+1}, v{M}")
    a.e("s_waitcnt lgkmcnt(0)")
    a.e(f"v_readfirstlane_b32 s22, v{M+1}")
    for r in range(9): a.e(f"v_add_f32 v{O0+r}, v{O0+r}, v{S0+r}")
    a.e("s_andn2_b32 s22, s22, s36")
    a.e("s_cbranch_scc1 L_aa_slow")
    tsig_prep(1, S_G)
    attn_store(O0, 29)
    mark()

    def body():
        a.raw(".p2align 6")
        a.label("L_aa_body")
        for t in range(4):
            c = t % 2; p = 1 - c
            ex = lambda S, i: a.e(f"v_exp_f32 v{S+i}, v{S+i}")
            for i in range(2): ex(S0, i)
            smf(O1, VBUF[p] + 4, S1 + 8)
            a.e("s_waitcnt lgkmcnt(0)")
            for i in range(2, 5): ex(S0, i)
            smm(S1, KBUF[c], Q1)
            a.e(f"ds_read_b128 {X(KBUF[c],4)}, v{VK} offset:{(t+2)*4096}")
            a.e("s_mov_b64 exec, s[30:31]")
            a.e(f"ds_read_b128 {X(VBUF[p],4)}, v{VV} offset:{(t+1)*4096}")
            a.e(f"ds_read_b128 {X(VBUF[p]+4,4)}, v{VV} offset:{(t+1)*4096+512}")
            a.e("s_mov_b64 exec, -1")
            for i in range(5, 11): ex(S0, i)
            smf(O0, VBUF[c], S0)
            for i in range(11, 16): ex(S0, i)
            for i in range(2): ex(S1, i)
            smf(O0, VBUF[c] + 4, S0 + 8)
            for i in range(2, 5): ex(S1, i)
            smm(S0, KBUF[p], Q0)
            for i in range(5, 11): ex(S1, i)
            smf(O1, VBUF[c], S1)
            for i in range(11, 16): ex(S1, i)
        a.e(f"v_add_u32 v{VK}, 16384, v{VK}\nv_add_u32 v{VV}, 16384, v{VV}")
        a.e("s_setpc_b64 s[34:35]")
        a.label("L_aa_slow")
        a.e("s_waitcnt vmcnt(0)\ns_barrier")
        a.e(f"s_lshl_b32 s43, s{S_W}, 13\ns_add_u32 s42, s43, {KVA}\ns_add_u32 s42, s42, s{S_BUF}")
        dma(8, 42, 43)
        a.e("s_waitcnt vmcnt(0)\ns_barrier")
        a.e(f"v_mov_b32 v{VK2}, v{V_L16}")
        for q in range(2): a.e(f"v_mov_b32 v{M+q}, {NEGBIG}")
        a.e("s_mov_b32 s22, 64")
        a.label("L_aa_s1")
        a.e(f"ds_read_b128 {X(KBUF[0],4)}, v{VK2}")
        a.e(f"v_add_u32 v{VK2}, 2048, v{VK2}")
        a.e("s_waitcnt lgkmcnt(0)")
        smm(S0, KBUF[0], Q0); smm(S1, KBUF[0], Q1)
        a.e("s_nop 12")
        for q in range(8): a.e(f"v_max3_f32 v{M}, v{S0+2*q}, v{S0+2*q+1}, v{M}")
        for q in range(8): a.e(f"v_max3_f32 v{M+1}, v{S1+2*q}, v{S1+2*q+1}, v{M+1}")
        a.e("s_sub_u32 s22, s22, 1\ns_cmp_lg_u32 s22, 0\ns_cbranch_scc1 L_aa_s1")
        for q in range(2):
            a.e(f"v_mov_b32 v{M+2}, v{M+q}\ns_nop 1\nv_permlane32_swap_b32 v{M+q}, v{M+2}\nv_max_f32 v{M+q}, v{M+q}, v{M+2}")
        for r in range(32): a.e(f"v_mov_b32 v{O0+r}, 0")
        a.e(f"v_add_u32 v{VK}, -131072, v{VK}\nv_add_u32 v{VV}, -131072, v{VV}")
        a.e("s_mov_b32 s22, 32")
        a.label("L_aa_s2")
        a.e(f"ds_read_b128 {X(KBUF[0],4)}, v{VK}")
        a.e("s_mov_b64 exec, s[30:31]")
        a.e(f"ds_read_b128 {X(VBUF[0],4)}, v{VV}\nds_read_b128 {X(VBUF[0]+4,4)}, v{VV} offset:512")
        a.e("s_mov_b64 exec, -1")
        a.e(f"v_add_u32 v{VK}, 4096, v{VK}\nv_add_u32 v{VV}, 4096, v{VV}")
        a.e("s_waitcnt lgkmcnt(0)")
        smm(S0, KBUF[0], Q0); smm(S1, KBUF[0], Q1)
        a.e("s_nop 12")
        for S, m in ((S0, M), (S1, M + 1)):
            for i in range(16): a.e(f"v_sub_f32 v{S+i}, v{S+i}, v{m}")
            for i in range(16): a.e(f"v_exp_f32 v{S+i}, v{S+i}")
        a.e("s_nop 1")
        smf(O0, VBUF[0], S0); smf(O0, VBUF[0] + 4, S0 + 8); smf(O1, VBUF[0], S1); smf(O1, VBUF[0] + 4, S1 + 8)
        a.e("s_nop 12")
        a.e("s_sub_u32 s22, s22, 1\ns_cmp_lg_u32 s22, 0\ns_cbranch_scc1 L_aa_s2")
        a.e("s_mov_b32 s36, -1\ns_barrier")
        wv_dma()
        a.e("s_branch L_aa_xchg")
    deferred.append(body)

def phase_oproj(which):
    a.c(f"================ oproj{which}")
    LL, LE, LB = lab("op_L"), lab("op_end"), lab("op_b")
    stage = L_XB if which == "A" else L_XH
    a.e(f"s_cmp_lt_u32 s{S_W}, 4\ns_cbranch_scc1 {LL}")
    a.e(f"s_lshl_b32 s22, s{S_RT}, 15\ns_lshl_b32 s23, s{S_WL}, 13\ns_add_u32 s22, s22, s23\ns_add_u32 s22, s22, {OBUF}\ns_add_u32 s23, s23, {stage}")
    if which == "A": tpoll(1, 0x00ff00ff, 0xff00ff00)
    else: tpoll(3, 0x55555555, 0xaaaaaaaa)
    dma(8, 22, 23)
    a.label(LB)
    mark()
    a.e("s_waitcnt vmcnt(0)\ns_barrier")
    mark()
    a.e(f"s_branch {LE}")
    a.label(LL)
    a.e(f"v_add_u32 v{XA}, {stage}, v{V_L16}")
    for q in range(8):
        a.e(f"v_lshlrev_b32 v{RES+2*q}, 16, v{XRES+q}")
        a.e(f"v_and_b32 v{RES+2*q+1}, 0xffff0000, v{XRES+q}")
    a.e(f"s_lshl_b32 s24, s{S_CB}, 2\ns_add_u32 s24, s24, s{S_WL}")
    a.e(f"s_lshl_b32 s22, s{S_RT}, 15\ns_lshl_b32 s23, s24, 11\ns_add_u32 s26, s22, s23\ns_add_u32 s26, s26, {X0}")
    a.e(f"s_lshl_b32 s22, s{S_RT}, 12\ns_lshl_b32 s23, s24, 8\ns_add_u32 s27, s22, s23\ns_add_u32 s27, s27, {STP}\nv_lshrrev_b32 v{V_T0+2}, 2, v{V_L16}")
    if which == "A": tsig_prep(2, None)
    else: tsig_prep(4, S_G)
    mark()
    a.e("s_waitcnt vmcnt(0)\ns_barrier")
    mark()
    gemm("T", 1, "reg", XA)
    a.e("s_nop 11")
    for r in range(16): a.e(f"v_add_f32 v{ACC+r}, v{ACC+r}, v{RES+r}")
    for q in range(8): a.e(f"v_cvt_pk_bf16_f32 v{XRES+q}, v{ACC+2*q}, v{ACC+2*q+1}")
    if which == "B":
        a.e(f"s_cmp_eq_u32 s{S_IT}, 1\ns_cbranch_scc1 L_final")
    tstore([f"buffer_store_dwordx4 {X(XRES,4)}, v{V_L16}, s[8:11], s26 offen", f"buffer_store_dwordx4 {X(XRES+4,4)}, v{V_L16}, s[8:11], s26 offen offset:1024"])
    a.e(f"v_pk_mul_f32 {X(XW+2,2)}, {X(ACC,2)}, {X(ACC,2)}\nv_pk_add_f32 {X(XW,2)}, {X(ACC,2)}, {X(ACC+2,2)}")
    for q in range(1, 8):
        a.e(f"v_pk_fma_f32 {X(XW+2,2)}, {X(ACC+2*q,2)}, {X(ACC+2*q,2)}, {X(XW+2,2)}")
        if q > 1: a.e(f"v_pk_add_f32 {X(XW,2)}, {X(XW,2)}, {X(ACC+2*q,2)}")
    a.e(f"v_add_f32 v{XW}, v{XW}, v{XW+1}\nv_add_f32 v{XW+2}, v{XW+2}, v{XW+3}\ns_nop 1")
    a.e(f"v_permlane32_swap_b32 v{XW}, v{XW+2}")
    a.e(f"v_add_f32 v{XW}, v{XW}, v{XW+2}")
    tstore_sig([f"buffer_store_dword v{XW}, v{V_T0+2}, s[8:11], s27 offen"])
    a.label(LE)
    mark()

def phase_qkvb():
    a.c("================ qkvB")
    LL, LE, LK, LS, LST = lab("qb_L"), lab("qb_end"), lab("qb_k"), lab("qb_sig"), lab("qb_st")
    a.e(f"s_and_b32 s25, s{S_WL}, 1")
    a.e(f"s_lshl_b32 s26, s{S_G}, 19\ns_lshl_b32 s23, s{S_RB}, 14\ns_add_u32 s26, s26, s23\ns_lshl_b32 s23, s25, 12\ns_add_u32 s26, s26, s23\ns_add_u32 s26, s26, s{S_BUF}\ns_add_u32 s26, s26, {KVB}")
    a.e(f"s_add_u32 s27, s26, 8192\ns_add_u32 s28, s23, {L_KVB + 8*8192}")
    a.e(f"v_add_u32 v{XA}, {L_XB}, v{V_L16}")
    a.e(f"s_lshl_b32 s47, s{S_CB}, 2\ns_add_u32 s47, s47, s{S_WL}")
    a.e(f"s_cmp_lt_u32 s{S_W}, 4\ns_cbranch_scc1 {LL}")
    qkvb_tile_H(24)
    cs_loads_T(24)
    pf_setup(47)
    kperm_addr(VADR)
    a.e(f"v_add_u32 v{VADR+1}, s28, v{VADR}")
    a.e(f"s_lshl_b32 s22, s{S_RB}, 16\ns_lshl_b32 s23, s{S_WL}, 14\ns_add_u32 s22, s22, s23\ns_add_u32 s22, s22, {X0}\ns_add_u32 s23, s23, {L_XB}")
    tpoll(2, 0x0f0f0f0f, 0x0f0f0f0f)
    dma_loop(4, 22, 23)
    a.e(f"s_cmp_ge_u32 s{S_WL}, 2\ns_cbranch_scc1 {LK}")
    mark()
    a.e("s_waitcnt vmcnt(0)\ns_barrier")
    mark()
    stats_read_T(2)
    a.e(f"s_cmp_eq_u32 s{S_IT}, 0\ns_cselect_b64 vcc, -1, 0")
    def pfhook(s):
        def f():
            l = lab("qb_pf")
            a.e(f"s_cbranch_vccz {l}")
            pf(s)
            a.label(l)
        return f
    gemm("T", 2, "reg", XA, {s: pfhook(s) for s in range(32)})
    a.e(f"s_lshl_b32 s22, s25, 12\ns_add_u32 s22, s22, {L_Q}")
    a.e(f"v_add_u32 v{VADR}, s22, v{V_L16}")
    a.e("s_nop 6")
    epi_T(ACC, MEAN0, RSTD0, f32(QSCALE))
    epi_T(ACC + 16, MEAN1, RSTD1, f32(QSCALE))
    for r in range(2):
        for e in range(2):
            a.e(f"ds_write_b128 v{VADR}, {X(ACC+16*r+4*e,4)} offset:{e*2048+r*1024}")
    a.e(f"s_branch {LE}")
    a.label(LK)
    mark()
    a.e("s_waitcnt vmcnt(0)\ns_barrier")
    mark()
    a.e("s_setprio 2")
    stats_read_T(2)
    gemm("T", 2, "reg", XA)
    a.e("s_nop 10")
    for r in range(2):
        epi_T(ACC + 16 * r, MEAN0 + 2 * r, RSTD0 + 2 * r)
        for e in range(2):
            a.e(f"buffer_store_dwordx4 {X(ACC+16*r+4*e,4)}, v{VADR}, s[8:11], s{26+r} offen offset:{e*2048} {ST1}")
    for r in range(2):
        for e in range(2):
            a.e(f"ds_write_b128 v{VADR+1}, {X(ACC+16*r+4*e,4)} offset:{r*8192+e*2048}")
    a.e(f"s_branch {LS}")
    a.label(LL)
    a.e(f"s_add_u32 s24, s47, {T_OB}")
    pf_setup(24)
    a.e(f"s_cmp_ge_u32 s{S_WL}, 2\ns_cbranch_scc1 {LST}")
    a.e(f"s_lshl_b32 s24, s{S_G}, 1\ns_add_u32 s24, s24, s25\ns_add_u32 s24, s24, {T_B+32}")
    cs_loads_N(24)
    a.e(f"s_lshl_b32 s23, s25, 15\ns_add_u32 s23, s23, {L_WV}")
    a.e(f"v_add_u32 v{WA}, s23, v{V_L16}")
    vfrag_addr(VADR)
    a.e(f"v_lshrrev_b32 v{VADR+1}, 4, v{V_I}")
    a.e(f"v_lshl_add_u32 v{VADR}, v{VADR+1}, 11, v{VADR}")
    a.e(f"v_add_u32 v{VADR+1}, s28, v{VADR}")
    mark()
    a.e("s_waitcnt vmcnt(0)\ns_barrier")
    mark()
    a.e("s_setprio 2")
    gemm("N", 2, "lds", XA)
    epi_N_read(0, XW, XW + 16)
    epi_N_read(1, WW, WW + 16)
    for r in range(2):
        a.e(f"s_waitcnt lgkmcnt({8-8*r})")
        epi_N(ACC + 16 * r, XW if r == 0 else WW, (XW if r == 0 else WW) + 16)
        for m_ in range(2):
            a.e(f"buffer_store_dwordx4 {X(ACC+16*r+4*m_,4)}, v{VADR}, s[8:11], s{26+r} offen offset:{1024+m_*512} {ST1}")
    for r in range(2):
        for m_ in range(2):
            a.e(f"ds_write_b128 v{VADR+1}, {X(ACC+16*r+4*m_,4)} offset:{r*8192+1024+m_*512}")
    a.label(LS)
    a.e(f"v_mov_b32 v{V_T0}, {L_CNT}\nv_mov_b32 v{V_T0+1}, 1")
    a.e(f"v_mul_u32_u24 v{V_T0+2}, 4100, v{V_I}\ns_add_u32 s22, s{S_IT}, 1\nv_mov_b32 v{V_T0+3}, s22")
    a.e(f"s_sub_u32 s23, 31, s{S_RB}\ns_min_u32 s23, s23, 4\ns_lshl_b32 s44, 2, s23\ns_sub_u32 s44, s44, 1\ns_mov_b32 s45, 0")
    a.e("s_mov_b64 exec, 1")
    a.e("s_waitcnt vmcnt(0)")
    a.e(f"ds_add_rtn_u32 v{V_T0+1}, v{V_T0}, v{V_T0+1}")
    a.e("s_waitcnt lgkmcnt(0)")
    a.e(f"v_readfirstlane_b32 s22, v{V_T0+1}")
    a.e("s_mov_b64 exec, -1\ns_setprio 0\ns_nop 1")
    a.e(f"s_cmp_lg_u32 s22, 3\ns_cbranch_scc1 {LE}")
    a.e("s_mov_b64 exec, s[44:45]")
    a.e(f"buffer_store_dword v{V_T0+3}, v{V_T0+2}, s[8:11], s{S_MB} offen offset:384 {ST1}")
    a.e("s_mov_b64 exec, -1")
    a.e(f"s_branch {LE}")
    a.label(LST)
    a.e(f"s_lshl_b32 s24, s{S_RB}, 13\ns_lshl_b32 s23, s25, 12\ns_add_u32 s24, s24, s23\ns_add_u32 s24, s24, {STP}\nv_lshrrev_b32 v{V_T0+2}, 2, v{V_L16}")
    tpoll(2, 0x0f0f0f0f, 0x0f0f0f0f)
    stats_wave(24, 25)
    mark()
    a.e("s_barrier")
    mark()
    for i in range(32): pf(i)
    a.label(LE)
    mark()

def phase_attnb():
    a.c("================ attnB")
    C = O1
    LJ = lab("ab_j")
    a.e("s_waitcnt lgkmcnt(0)")
    attn_init(1)
    a.e(f"v_lshlrev_b32 v{V_T0}, 3, v{V_H}")
    a.e(f"v_sub_u32 v{V_T0}, v{V_I}, v{V_T0}")
    a.e(f"v_mov_b32 v{M+3}, {NEGBIG}")
    for r in range(16):
        kk = 16 * (r // 8) + 4 * ((r // 4) & 1) + r % 4
        a.e(f"v_cmp_le_i32 s[{40+2*(r%2)}:{41+2*(r%2)}], {kk}, v{V_T0}")
        if r: a.e(f"v_cndmask_b32 v{C+r-1}, v{M+3}, 0, s[{40+2*((r-1)%2)}:{41+2*((r-1)%2)}]")
        else: a.e("s_nop 0")
        a.e("s_nop 0")
    a.e(f"v_cndmask_b32 v{C+15}, v{M+3}, 0, s[42:43]")
    a.e(f"s_and_b32 s25, s{S_W}, 1\ns_lshr_b32 s26, s{S_W}, 1\ns_lshl_b32 s27, s{S_RB}, 1\ns_add_u32 s27, s27, s25")
    a.e(f"s_lshl_b32 s22, s26, 11\ns_lshl_b32 s23, s25, 13\ns_add_u32 s22, s22, s23\ns_add_u32 s22, s22, {L_KVB}")
    a.e(f"v_add_u32 v{VK}, s22, v{V_L16}")
    vfrag_addr(VV)
    a.e(f"v_add_u32 v{VV}, s22, v{VV}")
    a.e(f"v_add_u32 v{VK2}, 32768, v{VK}\nv_add_u32 v{VV2}, 32768, v{VV}")
    a.e(f"s_lshl_b32 s29, s{S_G}, 2\ns_add_u32 s29, s29, s26\ns_lshl_b32 s29, s29, 10\ns_lshl_b32 s22, s27, 15\ns_add_u32 s29, s29, s22\ns_add_u32 s29, s29, {OBUF}")
    a.e(f"s_cmp_lg_u32 s26, 1\ns_cbranch_scc1 {LJ}")
    a.e(f"s_lshl_b32 s22, s{S_G}, 19\ns_lshl_b32 s23, s{S_RB}, 14\ns_add_u32 s22, s22, s23\ns_lshl_b32 s23, s25, 15\ns_add_u32 s22, s22, s23\ns_add_u32 s22, s22, s{S_BUF}\ns_add_u32 s22, s22, {KVB - 65536}\ns_add_u32 s23, s23, {L_KVB}")
    a.e(f"s_min_u32 s28, s{S_RB}, 4\ns_lshl_b32 s44, 2, s28\ns_sub_u32 s44, s44, 1\ns_mov_b32 s45, 0\ns_add_u32 s39, s{S_IT}, 1")
    mpoll(384, 39, 44, sleep=2)
    dma_loop(8, 22, 23)
    a.label(LJ)
    a.e(f"s_lshl_b32 s22, s{S_W}, 10\ns_add_u32 s22, s22, {L_Q}")
    a.e(f"v_add_u32 v{V_T0+2}, s22, v{V_L16}")
    a.e(f"s_cmp_eq_u32 s{S_IT}, 0\ns_cselect_b32 s22, 0xc3, 0x03\ns_lshr_b32 s22, s22, s{S_W}\ns_and_b32 s22, s22, 1\ns_cselect_b64 vcc, -1, 0")
    a.e(f"s_sub_u32 s43, s{S_W}, 2\ns_lshl_b32 s28, s{S_IT}, 4\ns_or_b32 s28, s28, s43\ns_lshr_b32 s23, s{S_CB}, 1\ns_lshl_b32 s23, s23, 5\ns_or_b32 s28, s28, s23")
    a.e(f"s_lshl_b32 s43, s43, 13\ns_add_u32 s42, s43, {T_KV*32768}\ns_add_u32 s43, s43, {L_WKV}")
    mark()
    a.e("s_waitcnt vmcnt(0) lgkmcnt(0)\ns_barrier")
    mark()
    def adr(base, base2, off): return (base, off) if off < 32768 + 8192 else (base2, off - 32768)
    def rdK(n):
        b, o = adr(VK, VK2, (8 - n) * 8192)
        a.e(f"ds_read_b128 {X(KBUF[n%2],4)}, v{b} offset:{o}")
    def rdV(n):
        b, o = adr(VV, VV2, (8 - n) * 8192)
        a.e("s_mov_b64 exec, s[30:31]")
        a.e(f"ds_read_b128 {X(VBUF[n%2],4)}, v{b} offset:{o+1024}")
        a.e(f"ds_read_b128 {X(VBUF[n%2]+4,4)}, v{b} offset:{o+1536}")
        a.e("s_mov_b64 exec, -1")
    def pfg(lo, hi):
        l = lab("ab_pf")
        a.e(f"s_cbranch_vccz {l}")
        for i in range(lo, hi): pf(i)
        a.label(l)
    SS = (S0, S1)
    a.e(f"ds_read_b128 {X(Q0,4)}, v{V_T0+2}")
    rdK(0); rdK(1); rdV(0)
    a.e("s_waitcnt lgkmcnt(3)")
    smm(S0, KBUF[0], Q0, X(C, 16))
    l = lab("ab_wkv")
    a.e(f"s_cmp_ge_u32 s28, 4\ns_cbranch_scc1 {l}")
    dma(8, 42, 43, flag="")
    a.label(l)
    PF = [0, 6, 12, 17, 22, 27, 32]
    pfg(PF[0], PF[1])
    a.e("s_nop 6")
    for r in range(16): a.e(f"v_sub_f32 v{C+r}, v{M+3}, v{C+r}")
    for n in range(9):
        Sc, Sp = SS[n % 2], SS[1 - n % 2]
        ex = lambda i: a.e(f"v_exp_f32 v{Sc+i}, v{Sc+i}")
        for i in range(2): ex(i)
        if n: smf(O0, VBUF[(n-1) % 2] + 4, Sp + 8)
        a.e("s_waitcnt lgkmcnt(0)")
        for i in range(2, 5): ex(i)
        if n < 8: smm(Sp, KBUF[(n+1) % 2], Q0, X(C, 16) if n == 7 else "0")
        if n < 7: rdK(n + 2)
        if n < 8: rdV(n + 1)
        for i in range(5, 11): ex(i)
        smf(O0, VBUF[n % 2], Sc)
        if n < 5: pfg(PF[n+1], PF[n+2])
        for i in range(11, 16): ex(i)
        if n < 8:
            a.e(f"s_cmp_eq_u32 s27, {n}\ns_cbranch_scc1 L_ab_exit{n}")
    a.e("s_nop 1")
    a.label("L_ab_tail0")
    smf(O0, VBUF[0] + 4, S0 + 8)
    a.label("L_ab_fin")
    tsig_prep(3, S_W)
    range_check(O0 + 8, 40)
    a.e("s_cbranch_scc1 L_ab_slow")
    a.label("L_ab_store")
    attn_store(O0, 29)
    mark()
    def rest():
        for n in range(8):
            a.label(f"L_ab_exit{n}")
            if n < 4: pfg(PF[n+2], 32)
            if n % 2 == 0: a.e("s_branch L_ab_tail0")
            else:
                smf(O0, VBUF[1] + 4, S1 + 8)
                a.e("s_branch L_ab_fin")
        a.label("L_ab_slow")
        a.e("s_waitcnt lgkmcnt(0)")
        a.e(f"v_mov_b32 v{M}, {NEGBIG}")
        a.e("s_min_u32 s22, s27, 8")
        for ps in range(2):
            a.e(f"v_add_u32 v{V_T0+2}, {8*8192}, v{VK}\nv_add_u32 v{V_T0+3}, {8*8192}, v{VV}")
            a.e("s_mov_b32 s23, 0")
            a.label(f"L_ab_s{ps}")
            a.e(f"ds_read_b128 {X(KBUF[0],4)}, v{V_T0+2}")
            a.e("s_mov_b64 exec, s[30:31]")
            a.e(f"ds_read_b128 {X(VBUF[0],4)}, v{V_T0+3} offset:1024\nds_read_b128 {X(VBUF[0]+4,4)}, v{V_T0+3} offset:1536")
            a.e("s_mov_b64 exec, -1")
            a.e(f"v_add_u32 v{V_T0+2}, -8192, v{V_T0+2}\nv_add_u32 v{V_T0+3}, -8192, v{V_T0+3}")
            for r in range(16): a.e(f"v_mov_b32 v{S1+r}, 0")
            l1, l2 = lab("ab_sm"), lab("ab_sm")
            a.e(f"s_cmp_lg_u32 s23, 0\ns_cbranch_scc1 {l1}")
            for r in range(16): a.e(f"v_sub_f32 v{S1+r}, v{M+3}, v{C+r}")
            a.label(l1)
            a.e(f"s_cmp_lg_u32 s23, 8\ns_cbranch_scc1 {l2}")
            for r in range(16): a.e(f"v_mov_b32 v{S1+r}, v{C+r}")
            a.label(l2)
            a.e("s_waitcnt lgkmcnt(0)\ns_nop 1")
            smm(S0, KBUF[0], Q0, X(S1, 16))
            a.e("s_nop 12")
            if ps == 0:
                for q in range(8): a.e(f"v_max3_f32 v{M}, v{S0+2*q}, v{S0+2*q+1}, v{M}")
            else:
                for i in range(16): a.e(f"v_sub_f32 v{S0+i}, v{S0+i}, v{M}")
                for i in range(16): a.e(f"v_exp_f32 v{S0+i}, v{S0+i}")
                a.e("s_nop 1")
                smf(O0, VBUF[0], S0); smf(O0, VBUF[0] + 4, S0 + 8)
                a.e("s_nop 12")
            a.e(f"s_add_u32 s23, s23, 1\ns_cmp_le_u32 s23, s22\ns_cbranch_scc1 L_ab_s{ps}")
            if ps == 0:
                a.e(f"v_mov_b32 v{M+2}, v{M}\ns_nop 1\nv_permlane32_swap_b32 v{M}, v{M+2}\nv_max_f32 v{M}, v{M}, v{M+2}")
                for r in range(16): a.e(f"v_mov_b32 v{O0+r}, 0")
        a.e("s_branch L_ab_store")
    deferred.append(rest)

def gen_main():
    L = "main_kernel"
    a.raw(f".globl {L}\n.p2align 8\n.type {L},@function")
    a.label(L)
    a.e("s_cmp_ge_u32 s2, 256\ns_cbranch_scc1 L_end_main")
    stamp_start()
    a.e("s_load_dwordx2 s[4:5], s[0:1], 80")
    a.e("s_load_dwordx2 s[6:7], s[0:1], 64")
    a.e(f"v_and_b32 v{V_L16}, 63, v0")
    a.e(f"v_lshrrev_b32 v{V_T0}, 6, v0")
    a.e(f"v_and_b32 v{V_I}, 31, v0")
    a.e(f"v_readfirstlane_b32 s{S_W}, v{V_T0}")
    a.e(f"v_bfe_u32 v{V_H}, v0, 5, 1")
    a.e(f"v_lshlrev_b32 v{V_L16}, 4, v{V_L16}")
    a.e(f"s_and_b32 s{S_RB}, s2, 7\ns_lshl_b32 s{S_RB}, s{S_RB}, 2\ns_lshr_b32 s22, s2, 6\ns_add_u32 s{S_RB}, s{S_RB}, s22")
    a.e(f"s_lshr_b32 s{S_G}, s2, 3\ns_and_b32 s{S_G}, s{S_G}, 7")
    a.e(f"s_lshl_b32 s{S_RT}, s{S_RB}, 1\ns_and_b32 s22, s{S_G}, 1\ns_add_u32 s{S_RT}, s{S_RT}, s22\ns_lshr_b32 s{S_CB}, s{S_G}, 1")
    a.e(f"s_and_b32 s{S_WL}, s{S_W}, 3\ns_mov_b32 s{S_IT}, 0\ns_mov_b32 s{S_BUF}, 0")
    a.e("s_waitcnt lgkmcnt(0)")
    srd(8, 4, WS_SIZE)
    srd(12, 6, 0x200000)
    a.e(f"s_lshl_b32 s22, s{S_RB}, 12\ns_lshl_b32 s{S_MB}, s{S_G}, 9\ns_add_u32 s{S_MB}, s{S_MB}, s22\ns_add_u32 s{S_MB}, s{S_MB}, {MBX}\ns_mov_b32 s{S_FAST}, 0")
    lx = lab("in_xcc")
    a.e(f"s_cmp_lg_u32 s{S_W}, 3\ns_cbranch_scc1 {lx}")
    a.e(f"s_getreg_b32 s23, hwreg(HW_REG_XCC_ID, 0, 4)\ns_add_u32 s23, s23, 1\nv_mov_b32 v{V_T0+1}, s23\nv_lshlrev_b32 v{V_T0}, 9, v{V_I}")
    a.e(f"s_lshl_b32 s23, s{S_G}, 2\ns_add_u32 s22, s22, s23\ns_add_u32 s22, s22, {MBX}")
    a.e("s_mov_b64 exec, 0xff")
    a.e(f"buffer_store_dword v{V_T0+1}, v{V_T0}, s[8:11], s22 offen offset:256 {ST1}")
    a.e("s_mov_b64 exec, -1")
    a.label(lx)
    LL, LJ = lab("in_L"), lab("in_j")
    a.e(f"s_lshl_b32 s24, s{S_CB}, 2\ns_add_u32 s24, s24, s{S_WL}")
    a.e(f"s_cmp_lt_u32 s{S_W}, 4\ns_cbranch_scc1 {LL}")
    pf_setup(24)
    for i in range(32): pf(i)
    a.e(f"s_branch {LJ}")
    a.label(LL)
    a.e(f"s_lshl_b32 s22, s{S_RT}, 15\ns_lshl_b32 s23, s24, 11\ns_add_u32 s22, s22, s23\ns_add_u32 s22, s22, {X0}")
    a.e(f"buffer_load_dwordx4 {X(XRES,4)}, v{V_L16}, s[8:11], s22 offen")
    a.e(f"buffer_load_dwordx4 {X(XRES+4,4)}, v{V_L16}, s[8:11], s22 offen offset:1024")
    a.e(f"s_cmp_ge_u32 s{S_CB}, 2\ns_cbranch_scc1 {LJ}")
    a.e(f"s_lshl_b32 s43, s{S_W}, 13\ns_add_u32 s42, s43, {T_KV*32768}\ns_add_u32 s43, s43, {L_WKV}")
    dma(8, 42, 43, flag="")
    a.label(LJ)
    a.label("L_iter")
    phase_qkva()
    phase_attna()
    phase_oproj("A")
    phase_qkvb()
    phase_attnb()
    phase_oproj("B")
    a.e(f"s_add_u32 s{S_IT}, s{S_IT}, 1\ns_add_u32 s{S_BUF}, s{S_BUF}, {RSTRIDE}")
    a.e(f"s_cmp_lt_u32 s{S_IT}, 2\ns_cbranch_scc1 L_iter")
    a.e("s_endpgm")
    a.label("L_final")
    a.e(f"v_lshlrev_b32 v{VADR}, 10, v{V_I}")
    a.e(f"v_lshl_add_u32 v{VADR}, v{V_H}, 3, v{VADR}")
    a.e(f"s_lshl_b32 s22, s{S_RT}, 15\ns_lshl_b32 s23, s24, 6\ns_add_u32 s22, s22, s23")
    for g in range(4):
        a.e(f"buffer_store_dwordx2 {X(XRES+2*g,2)}, v{VADR}, s[12:15], s22 offen offset:{16*g}")
    if INSTR:
        a.e("s_waitcnt vmcnt(0)")
        mark()
    a.label("L_end_main")
    a.e("s_endpgm")
    for d in deferred: d()
    kernels.append((L, 256, 100 if INSTR else 64))

def main(out):
    launches = [("prep_kernel", 162, 512, 2048), ("main_kernel", 256, 512, LDS_SIZE)]
    hdr = open("cdna_kernels/" + NAME + ".s.ref").read().split("\n")
    head = [l for l in hdr if l.startswith(";") and "@launch" not in l and "Override" not in l and "grid=ceil" not in l]
    s = "\n".join(head) + "\n"
    for k, g, b, l in launches:
        s += f"; @launch kernel={k} grid=({g},1,1) block=({b},1,1) lds={l}\n"
    if INSTR:
        per = "qa_poll qa_x qa_end aa_poll aa_kv aa_loop aa_end oa_poll oa_x oa_end qb_poll qb_x qb_end ab_poll ab_kv ab_end ob_poll ob_x ob_end"
        s += "; @marks start " + per + " " + per + "\n"
    s += '.amdgcn_target "amdgcn-amd-amdhsa--gfx950"\n.text\n'
    gen_prep(); gen_main()
    a.label("L_text_end")
    body = a.text()
    for p in check(body): print("HAZARD", p)
    s += body
    s += '.section .rodata,"a"\n'
    for lab_, vg, sg in kernels:
        s += f""".p2align 6
.amdhsa_kernel {lab_}
  .amdhsa_next_free_vgpr {vg}
  .amdhsa_next_free_sgpr {sg}
  .amdhsa_accum_offset {vg}
  .amdhsa_group_segment_fixed_size 0
  .amdhsa_kernarg_size 88
  .amdhsa_user_sgpr_count 2
  .amdhsa_user_sgpr_kernarg_segment_ptr 1
  .amdhsa_system_sgpr_workgroup_id_x 1
.end_amdhsa_kernel
"""
    open(out, "w").write(s)

if __name__ == "__main__":
    out = sys.argv[1] if len(sys.argv) > 1 else "cdna_kernels/" + NAME + ".s"
    if "instr" in sys.argv[2:]: INSTR = True
    OPT |= set(sys.argv[2:])
    main(out)
```

```python
import sys, math, struct
from asmlib import *

NAME = "interleave_layers__grouped_kv_mqa__sliding_block__prompt"
WF = 0x000000
T_Q, T_KV, T_OA, T_B, T_OB, T_N = 0, 16, 17, 33, 81, 97
CS = 0x310000
STP = 0x340000
RB = 0x400000; RSTRIDE = 0xD00000
X0, _unused, OBUF, KVB, KVA = [RB + o for o in (0, 0x200000, 0x400000, 0x800000, 0xC00000)]
FL = 0x2800000; FSTR = 4352
F_ALL, F_KV = 0, 32
MBX = 0x2900000
S_FAST, S_MB = 56, 57
S_TAG = 62
EPOFF = 0x2880000
WS_SIZE = 0x3000000
STAMP = 0x3000000
QSCALE = 0.25 * math.log2(math.e)
def f32(x): return "0x%08x" % struct.unpack("<I", struct.pack("<f", x))[0]
ONES2 = "0x3f803f80"
NEGBIG = f32(-1e30)
L_WV = 0
L_OWN = 65536
L_XB = 81920
L_XH = 32768
L_WKV = 114688
L_JOB = 98304
L_CSH = 156160
L_SM = 157184
L_X2 = 65536
L_WRAW = 131072
L_PREP = 32768
L_Q = 147456
L_STAT = 155648
L_RED = 139264
L_REDB = 40960
L_C = 163584
C_A, C_B, C_D, C_K, C_J, C_J2, C_P, C_X, C_H, C_W = 0, 8, 16, 20, 24, 28, 32, 48, 56, 60
LDS_SIZE = 163840

kernels = []
a = Asm()
INSTR = False
OPT = set()
NMARK = 28
def stamp_start():
    if INSTR:
        a.e("s_load_dwordx2 s[88:89], s[0:1], 80\ns_mov_b32 s94, s3")
        a.e("s_lshl_b32 s95, s2, 12\ns_lshl_b32 s94, s94, 9\ns_add_u32 s92, s94, s95")
        a.e(f"s_add_u32 s92, s92, {STAMP}\ns_mov_b32 s90, 0x4000000\ns_mov_b32 s91, 0x20000\ns_mov_b32 s93, 0")
        a.e("v_mov_b32 v126, 0\nv_mov_b32 v127, 0")
        mark()
def mark():
    if INSTR:
        a.e("s_memrealtime s[84:85]\ns_memtime s[86:87]\ns_mov_b32 m0, s93\ns_waitcnt lgkmcnt(0)")
        a.e("v_writelane_b32 v126, s84, m0\nv_writelane_b32 v127, s86, m0\ns_add_u32 s93, s93, 1")
def stamp_end():
    if INSTR:
        a.e("v_lshrrev_b32 v125, 1, v1")
        a.e("buffer_store_dwordx2 v[126:127], v125, s[88:91], s92 offen")

def srd(d, b, size):
    a.e(f"s_mov_b32 s{d}, s{b}\ns_mov_b32 s{d+1}, s{b+1}\ns_mov_b32 s{d+2}, {size:#x}\ns_mov_b32 s{d+3}, 0x20000")
def X(r, n): return f"v[{r}:{r+n-1}]"

V_L16, V_I, V_H, V_T0 = 1, 2, 3, 4
XRES = 8
ACC, XW, WW, RES = 16, 48, 80, 96
XA, WA, MEAN0, RSTD0, MEAN1, RSTD1, VADR = 112, 113, 114, 115, 116, 117, 118
VONE, VCT = 122, 123
WR = 128
S_W, S_RB, S_G, S_RT, S_CB, S_IT, S_BUF = 3, 16, 17, 18, 19, 20, 21
S_WL, S_CT = 46, 47
S_PF = 48
S_IT1 = 59
uid = [0]
def lab(p):
    uid[0] += 1
    return f"L_{p}_{uid[0]}"
ST1 = "sc0 sc1"
def bar(): a.e("s_barrier")

def dma(n1k, s_src, s_m0, flag="sc1"):
    for c in range(n1k):
        if c % 4 == 0:
            if c: a.e(f"s_add_u32 s{s_src}, s{s_src}, 4096\ns_add_u32 s{s_m0}, s{s_m0}, 4096")
            a.e(f"s_mov_b32 m0, s{s_m0}\ns_nop 0")
        a.e(f"buffer_load_dwordx4 v{V_L16}, s[8:11], s{s_src} offen offset:{(c%4)*1024} {flag} lds")
def pf_setup(s_tile):
    a.e(f"s_lshl_b32 s{S_PF}, s{s_tile}, 15")
    for g in range(1, 8): a.e(f"s_add_u32 s{S_PF+g}, s{S_PF}, {g*4096}")
def pf(i):
    a.e(f"buffer_load_dwordx4 {X(WR+4*i,4)}, v{V_L16}, s[8:11], s{S_PF+i//4} offen offset:{(i%4)*1024} sc1")

def gemm(steps, orient, wsrc, xa, hooks={}, filler=None, fill_from=0, per_step=2, c0="0", nbuf=None):
    n = len(steps)
    nbuf = nbuf or (4 if wsrc == "lds" else 8)
    q = []
    def xreg(i): return XW + 4 * (i % nbuf)
    def wreg(i): return WR + 4 * steps[i][1] if wsrc == "reg" else WW + 4 * (i % nbuf)
    def rd(i):
        if ("pre", i) in hooks: hooks[("pre", i)]()
        if wsrc == "lds":
            a.e(f"ds_read_b128 {X(wreg(i),4)}, v{WA} offset:{steps[i][1]*1024}"); q.append(("s", i))
        a.e(f"ds_read_b128 {X(xreg(i),4)}, v{xa} offset:{steps[i][2]}"); q.append(("s", i))
    def wait_for(pred):
        idx = [k for k, t in enumerate(q) if pred(t)]
        if not idx: return
        rem = len(q) - 1 - idx[-1]
        a.e(f"s_waitcnt lgkmcnt({min(rem, 15)})")
        del q[:idx[-1] + 1]
    filler = list(filler or [])
    pre = nbuf - 1
    for i in range(min(pre, n)): rd(i)
    for i in range(n):
        if i + pre < n: rd(i + pre)
        wait_for(lambda t: t == ("s", i))
        acc, ks, xoff, first = steps[i]
        w = X(wreg(i), 4); x = X(xreg(i), 4); A_ = X(acc, 16)
        c = c0 if first else A_
        if orient == "T": a.e(f"v_mfma_f32_32x32x16_bf16 {A_}, {w}, {x}, {c}")
        else: a.e(f"v_mfma_f32_32x32x16_bf16 {A_}, {x}, {w}, {c}")
        if i >= fill_from:
            k = 0
            while filler and k < per_step:
                f = filler.pop(0)
                if f == "WAITLDS": wait_for(lambda t: t[0] == "f"); continue
                a.e(f); k += 1
                if f.startswith("ds_"): q.append(("f", 0))
        if i in hooks: hooks[i]()
    assert not filler, filler
def steps1(acc, xbase=0, ks=range(32)):
    return [(acc, k, xbase + k * 1024, j == 0) for j, k in enumerate(ks)]

def stats_wave(s_src, s_r):
    for c in range(16):
        a.e(f"buffer_load_dword v{XW+c}, v{V_T0+2}, s[8:11], s{s_src} offen offset:{c*256} sc1")
    a.e(f"v_lshlrev_b32 v{V_T0}, 2, v{V_I}")
    if s_r is None: a.e(f"s_mov_b32 s38, {L_STAT}")
    else: a.e(f"s_lshl_b32 s38, s{s_r}, 8\ns_add_u32 s38, s38, {L_STAT}")
    a.e(f"v_add_u32 v{V_T0}, s38, v{V_T0}")
    a.e("s_waitcnt vmcnt(0)")
    for st in (8, 4, 2, 1):
        for c in range(st): a.e(f"v_add_f32 v{XW+c}, v{XW+c}, v{XW+c+st}")
    a.e(f"v_mul_f32 v{XW}, {f32(1/512)}, v{XW}")
    a.e(f"v_mov_b32 v{XW+1}, v{XW}\ns_nop 1")
    a.e(f"v_permlane32_swap_b32 v{XW}, v{XW+1}")
    a.e(f"v_fma_f32 v{XW+1}, -v{XW}, v{XW}, v{XW+1}")
    a.e(f"v_max_f32 v{XW+1}, 0, v{XW+1}")
    a.e(f"v_add_f32 v{XW+1}, {f32(1e-5)}, v{XW+1}")
    a.e(f"v_rsq_f32 v{XW+1}, v{XW+1}")
    a.e(f"ds_write_b32 v{V_T0}, v{XW}")
    a.e(f"ds_write_b32 v{V_T0}, v{XW+1} offset:128")
    a.e("s_waitcnt lgkmcnt(0)")

def stat_addr_T(s_r=None):
    a.e(f"v_lshlrev_b32 v{V_T0+3}, 2, v{V_I}")
    if s_r is None: a.e(f"v_add_u32 v{V_T0+3}, {L_STAT}, v{V_T0+3}")
    else: a.e(f"s_lshl_b32 s38, s{s_r}, 8\ns_add_u32 s38, s38, {L_STAT}\nv_add_u32 v{V_T0+3}, s38, v{V_T0+3}")
def stats_read_T(nrt):
    for r in range(nrt):
        a.e(f"ds_read2_b32 {X(MEAN0+2*r,2)}, v{V_T0+3} offset0:{64*r} offset1:{64*r+32}")
def epi_T_list(acc, vmean, vrstd, scale=None, n=16):
    L = []
    if scale: L.append(f"v_mul_f32 v{vrstd}, {scale}, v{vrstd}")
    for r in range(n): L.append(f"v_fma_f32 v{acc+r}, -v{vmean}, v{RES+r}, v{acc+r}")
    for r in range(n): L.append(f"v_mul_f32 v{acc+r}, v{vrstd}, v{acc+r}")
    for q in range(n // 2): L.append(f"v_cvt_pk_bf16_f32 v{acc+q}, v{acc+2*q}, v{acc+2*q+1}")
    return L
def epi_N_read_list(r, bm, br):
    L = []
    for g in range(4):
        L.append(f"ds_read_b128 {X(bm+4*g,4)}, v{V_T0+3} offset:{256*r+32*g}")
        L.append(f"ds_read_b128 {X(br+4*g,4)}, v{V_T0+3} offset:{256*r+128+32*g}")
    return L
def epi_N_list(acc, bm, br):
    L = []
    for r in range(16): L.append(f"v_fma_f32 v{acc+r}, -v{bm+r}, v{MEAN0}, v{acc+r}")
    for r in range(16): L.append(f"v_mul_f32 v{acc+r}, v{br+r}, v{acc+r}")
    for q in range(8): L.append(f"v_cvt_pk_bf16_f32 v{acc+q}, v{acc+2*q}, v{acc+2*q+1}")
    return L
def emit(L):
    for x in L: a.e(x)

def cs_loads_T(s_tile, n=4):
    a.e(f"s_lshl_b32 s38, s{s_tile}, 7\ns_add_u32 s38, s38, {CS}")
    a.e(f"v_lshlrev_b32 v{V_T0}, 4, v{V_H}")
    for g in range(n):
        a.e(f"buffer_load_dwordx4 {X(RES+4*g,4)}, v{V_T0}, s[8:11], s38 offen offset:{32*g} sc1")
def cs_loads_N(s_tile):
    a.e(f"s_lshl_b32 s38, s{s_tile}, 7\ns_add_u32 s38, s38, {CS}")
    a.e(f"v_lshlrev_b32 v{V_T0}, 2, v{V_I}")
    a.e(f"buffer_load_dword v{MEAN0}, v{V_T0}, s[8:11], s38 offen sc1")
    a.e(f"v_lshlrev_b32 v{V_T0+3}, 4, v{V_H}\nv_add_u32 v{V_T0+3}, {L_STAT}, v{V_T0+3}")
def kperm_addr(vd):
    a.e(f"v_and_b32 v{vd}, 0x330, v{V_L16}")
    a.e(f"v_bfe_u32 v{V_T0+1}, v{V_L16}, 6, 1")
    a.e(f"v_lshl_or_b32 v{vd}, v{V_T0+1}, 7, v{vd}")
    a.e(f"v_bfe_u32 v{V_T0+1}, v{V_L16}, 7, 1")
    a.e(f"v_lshl_or_b32 v{vd}, v{V_T0+1}, 6, v{vd}")
def vfrag_addr(vd):
    a.e(f"v_and_b32 v{vd}, 15, v{V_I}")
    a.e(f"v_lshl_add_u32 v{vd}, v{V_H}, 4, v{vd}")
    a.e(f"v_lshlrev_b32 v{vd}, 4, v{vd}")

def gpoll(s_off, imm, s_val, mask, sleep=1, vaddr_shift=True):
    L1, L2 = lab("poll"), lab("polled")
    a.e(f"v_lshrrev_b32 v{V_T0}, 2, v{V_L16}")
    a.e(f"s_mov_b32 s40, 400000\ns_mov_b64 exec, {mask}")
    a.label(L1)
    a.e(f"buffer_load_dword v{V_T0+1}, v{V_T0}, s[8:11], s{s_off} offen offset:{imm} sc1")
    a.e("s_waitcnt vmcnt(0)")
    a.e(f"v_cmp_gt_u32 vcc, s{s_val}, v{V_T0+1}")
    a.e(f"s_cbranch_vccz {L2}")
    a.e(f"s_sleep {sleep}\ns_sub_u32 s40, s40, 1\ns_cmp_lg_u32 s40, 0\ns_cbranch_scc1 {L1}")
    a.label(L2)
    a.e("s_mov_b64 exec, -1")
def tpoll(ph, lo_even, lo_odd, it0=None):
    a.e(f"s_lshl_b32 s39, s{S_IT}, 2\ns_add_u32 s39, s39, {ph}")
    a.e(f"s_bitcmp1_b32 s{S_G}, 0\ns_mov_b32 s42, {lo_even:#x}\ns_cselect_b32 s42, {lo_odd:#x}, s42")
    if it0: a.e(f"s_cmp_eq_u32 s{S_IT}, 0\ns_cselect_b32 s42, {it0:#x}, s42")
    a.e("s_mov_b32 s43, s42")
    gpoll(S_MB, 0, 39, "s[42:43]")
def tsig_prep(ph, s_par, va=V_T0):
    a.e(f"s_lshl_b32 s37, s{S_IT}, 2\ns_add_u32 s37, s37, {ph}\nv_mov_b32 v{va+1}, s37")
    a.e(f"v_lshlrev_b32 v{va}, 9, v{V_I}")
    a.e(f"s_lshl_b32 s37, s{S_RB}, 12\ns_lshl_b32 s44, s{S_G}, 5\ns_add_u32 s37, s37, s44\ns_lshl_b32 s44, s{S_W}, 2\ns_add_u32 s37, s37, s44\ns_add_u32 s37, s37, {MBX}")
    if s_par is None: a.e("s_mov_b64 s[44:45], 0xff")
    else: a.e(f"s_and_b32 s44, s{s_par}, 1\ns_lshl_b32 s44, 0x55, s44\ns_mov_b32 s45, 0")
def dual(fn):
    l1, l2 = lab("ts"), lab("ts")
    a.e(f"s_cmp_eq_u32 s{S_FAST}, 0\ns_cbranch_scc1 {l1}")
    fn("")
    a.label(l2)
    def later():
        a.label(l1); fn(ST1); a.e(f"s_branch {l2}")
    deferred.append(later)
def tstore(stores):
    dual(lambda fl: [a.e(st + " " + fl) for st in stores])
def tstore_sig(stores, va=V_T0):
    def f(fl):
        for st in stores: a.e(st + " " + fl)
        a.e("s_waitcnt vmcnt(0)\ns_mov_b64 exec, s[44:45]")
        a.e(f"buffer_store_dword v{va+1}, v{va}, s[8:11], s37 offen {fl}")
        a.e("s_mov_b64 exec, -1")
    dual(f)
def post(va, off):
    a.e(f"s_mov_b64 exec, 1\nds_add_u32 v{va}, v{VONE} offset:{off}\ns_mov_b64 exec, -1")
def cwait(va, off, s_tgt, vt):
    l = lab("cw")
    a.label(l)
    a.e(f"ds_read_b32 v{vt}, v{va} offset:{off}\ns_waitcnt lgkmcnt(0)\nv_readfirstlane_b32 s22, v{vt}\ns_nop 0\ns_cmp_lt_u32 s22, s{s_tgt}\ns_cbranch_scc1 {l}")

deferred = []
NPF_L, NPF_H, NPF_0 = 20, 16, 14

def kva_dest():
    a.e(f"s_lshr_b32 s26, s{S_RT}, 3\ns_lshl_b32 s27, s26, 14\ns_and_b32 s23, s{S_RT}, 3\ns_lshl_b32 s23, s23, 12\ns_add_u32 s27, s27, s23")
    a.e(f"s_and_b32 s23, s{S_RT}, 4\ns_lshl_b32 s23, s23, 9\ns_add_u32 s27, s27, s23\ns_add_u32 s27, s27, s{S_BUF}\ns_add_u32 s27, s27, {KVA}")
def arrive(extra=0):
    a.e(f"s_lshr_b32 s37, s{S_RT}, 3\ns_mul_i32 s37, s37, {FSTR}\ns_and_b32 s23, s{S_RT}, 7\ns_lshl_b32 s23, s23, 2\ns_add_u32 s23, s23, s{S_CB}\ns_lshl_b32 s23, s23, 3\ns_add_u32 s37, s37, s23\ns_add_u32 s37, s37, {FL + F_KV*FSTR + extra}")
    a.e(f"v_mov_b32 v{V_T0}, s{S_TAG}\nv_mov_b32 v{V_T0+1}, s{S_TAG+1}\nv_mov_b32 v{V_T0+2}, 0")
    a.e("s_mov_b64 exec, 1\ns_waitcnt vmcnt(0)")
    a.e(f"buffer_store_dwordx2 {X(V_T0,2)}, v{V_T0+2}, s[8:11], s37 offen {ST1}")
    a.e("s_mov_b64 exec, -1")
def tagpoll(s_off, mask, sleep=1):
    L1, L2 = lab("poll"), lab("polled")
    a.e(f"v_lshrrev_b32 v{V_T0+3}, 1, v{V_L16}")
    a.e(f"s_mov_b32 s40, 400000\ns_mov_b64 exec, {mask}")
    a.label(L1)
    a.e(f"buffer_load_dwordx2 {X(V_T0,2)}, v{V_T0+3}, s[8:11], s{s_off} offen sc1")
    a.e("s_waitcnt vmcnt(0)")
    a.e(f"v_cmp_ne_u64 vcc, s[{S_TAG}:{S_TAG+1}], {X(V_T0,2)}")
    a.e(f"s_cbranch_vccz {L2}")
    a.e(f"s_sleep {sleep}\ns_sub_u32 s40, s40, 1\ns_cmp_lg_u32 s40, 0\ns_cbranch_scc1 {L1}")
    a.label(L2)
    a.e("s_mov_b64 exec, -1")

def phase_qkva():
    a.c("================ qkvA")
    LL, LE = lab("qa_L"), lab("qa_end")
    a.e(f"v_add_u32 v{XA}, {L_XH}, v{V_L16}")
    a.e(f"s_cmp_lt_u32 s{S_W}, 4\ns_cbranch_scc1 {LL}")
    cs_loads_T(S_CT)
    stat_addr_T()
    a.e(f"s_lshl_b32 s22, s{S_WL}, 11\ns_add_u32 s22, s22, {L_Q}\nv_add_u32 v{VADR}, s22, v{V_L16}")
    a.e(f"s_lshl_b32 s22, s{S_RT}, 15\ns_lshl_b32 s23, s{S_WL}, 13\ns_add_u32 s22, s22, s23\ns_add_u32 s22, s22, {X0}\ns_add_u32 s23, s23, {L_XH}")
    tpoll(0, 0x000f000f, 0x0f000f00)
    dma(8, 22, 23)
    mark()
    a.e("s_waitcnt vmcnt(0)\ns_barrier")
    mark()
    a.e("s_barrier\ns_barrier")
    for i in range(NPF_H, 32): pf(i)
    a.e("s_waitcnt vmcnt(0)")
    a.label("L_qa_gemm")
    stats_read_T(1)
    a.label("L_qa_gemm2")
    gemm(steps1(ACC), "T", "reg", XA)
    a.e("s_nop 10")
    emit(epi_T_list(ACC, MEAN0, RSTD0, f32(QSCALE)))
    a.e(f"ds_write_b128 v{VADR}, {X(ACC,4)}")
    a.e(f"ds_write_b128 v{VADR}, {X(ACC+4,4)} offset:1024")
    a.e(f"s_branch {LE}")
    a.label(LL)
    LV, LS, LI, LNS, LR = lab("qa_v"), lab("qa_sig"), lab("qa_idle"), lab("qa_nost"), lab("qa_red")
    a.e(f"s_lshl_b32 s23, s{S_WL}, 13\nv_add_u32 v{XA}, s23, v{XA}\ns_add_u32 s23, s23, {L_WKV}\nv_add_u32 v{WA}, s23, v{V_L16}")
    a.e(f"s_mul_i32 s23, s{S_WL}, 4608\ns_add_u32 s23, s23, {L_JOB - 4608}\nv_add_u32 v{VADR+1}, s23, v{V_L16}")
    a.e(f"s_cmp_lg_u32 s{S_W}, 1\ns_cbranch_scc1 {LNS}")
    a.e(f"s_lshl_b32 s24, s{S_RT}, 12\ns_add_u32 s24, s24, {STP}\nv_lshrrev_b32 v{V_T0+2}, 2, v{V_L16}")
    tpoll(0, 0x000f000f, 0x0f000f00)
    stats_wave(24, None)
    a.label(LNS)
    a.e(f"s_cmp_ge_u32 s{S_CB}, 2\ns_cbranch_scc1 {LI}")
    a.e(f"s_mov_b32 s25, {T_KV}")
    kva_dest()
    a.e(f"s_cmp_eq_u32 s{S_CB}, 1\ns_cbranch_scc1 {LV}")
    for kind in ("K", "V"):
        nq = 2 if kind == "K" else 4
        if kind == "K":
            cs_loads_T(25, 2); kperm_addr(VADR); stat_addr_T()
        else:
            a.label(LV)
            cs_loads_N(25); vfrag_addr(VADR)
        mark()
        a.e("s_waitcnt vmcnt(0)\ns_barrier")
        mark()
        if kind == "K": stats_read_T(1)
        else: emit(epi_N_read_list(0, 32, 64))
        gemm(steps1(ACC, 0, range(8)), "T" if kind == "K" else "N", "lds", XA)
        lw = lab("qa_w0")
        a.e(f"s_cmp_eq_u32 s{S_W}, 0\ns_cbranch_scc1 {lw}")
        a.e("s_nop 9")
        for q in range(nq): a.e(f"ds_write_b128 v{VADR+1}, {X(ACC+4*q,4)} offset:{q*1024}")
        a.e(f"s_waitcnt lgkmcnt(0)\ns_barrier\ns_barrier\ns_branch {LE}")
        a.label(lw)
        a.e("s_nop 2\ns_barrier")
        pr = [48, 56, 80] if kind == "K" else [48, 80, 96]
        for w_ in range(3):
            for q in range(nq): a.e(f"ds_read_b128 {X(pr[w_]+4*q,4)}, v{VADR+1} offset:{(w_+1)*4608+q*1024}")
        for w_ in range(3):
            a.e(f"s_waitcnt lgkmcnt({(2-w_)*nq})")
            for q in range(2 * nq): a.e(f"v_pk_add_f32 {X(ACC+2*q,2)}, {X(ACC+2*q,2)}, {X(pr[w_]+2*q,2)}")
        if kind == "K":
            emit(epi_T_list(ACC, MEAN0, RSTD0, None, 8))
            a.e(f"buffer_store_dwordx4 {X(ACC,4)}, v{VADR}, s[8:11], s27 offen {ST1}")
            a.e(f"s_branch {LS}")
        else:
            emit(epi_N_list(ACC, 32, 64))
            a.e("s_mov_b32 exec_lo, 0xffff0000\ns_mov_b32 exec_hi, 0xffff0000")
            a.e(f"buffer_store_dwordx4 {X(ACC,4)}, v{VADR}, s[8:11], s27 offen offset:1024 {ST1}")
            a.e(f"buffer_store_dwordx4 {X(ACC+4,4)}, v{VADR}, s[8:11], s27 offen offset:1536 {ST1}")
            a.e("s_mov_b64 exec, -1")
    a.label(LS)
    a.e("s_barrier")
    a.label("L_arrive")
    arrive()
    a.e(f"s_branch {LE}")
    a.label(LI)
    mark()
    a.e("s_waitcnt vmcnt(0)\ns_barrier")
    mark()
    a.e("s_barrier\ns_barrier")
    a.label(LE)
    a.label("L_qa_end")
    mark()

Q0, Q1, KBUF, VBUF, S0, S1, O0, O1, IDX, VK, VV, M = 16, 20, (24, 28), (32, 40), 48, 64, 80, 96, 112, 113, 114, 116
def smf(O, V, S): a.e(f"v_smfmac_f32_32x32x32_bf16 {X(O,16)}, {X(V,4)}, {X(S,8)}, v{IDX}")
def smm(S, K, Q, C="0"): a.e(f"v_mfma_f32_32x32x16_bf16 {X(S,16)}, {X(K,4)}, {X(Q,4)}, {C}")
def v_init(n=16):
    a.e(f"s_mov_b32 s30, 0x110000\ns_mov_b32 s31, 0x110000\nv_mov_b32 v{VBUF[0]}, {ONES2}")
    a.e(f"v_cndmask_b32 v{VBUF[0]}, 0, v{VBUF[0]}, s[30:31]")
    for r in range(1, n): a.e(f"v_mov_b32 v{VBUF[0]+r}, v{VBUF[0]}")
    a.e("s_mov_b32 s30, 0xffff\ns_mov_b32 s31, 0xffff")
def attn_init():
    a.e(f"v_mov_b32 v{IDX}, 0xdddddddd")
    v_init()
    for r in range(32): a.e(f"v_mov_b32 v{O0+r}, 0")
LO_OK, HI_OK = f32(2.0 ** -60), f32(2.0 ** 60)
def range_check(l, sdst, acc=False):
    lo = f32(3000.0) if 'forceslow' in OPT else LO_OK
    a.e(f"v_cmp_nle_f32 vcc, {lo}, v{l}")
    a.e(f"s_or_b64 s[{sdst}:{sdst+1}], s[{sdst}:{sdst+1}], vcc" if acc else f"s_mov_b64 s[{sdst}:{sdst+1}], vcc")
    a.e(f"v_cmp_nge_f32 vcc, {HI_OK}, v{l}")
    a.e(f"s_or_b64 s[{sdst}:{sdst+1}], s[{sdst}:{sdst+1}], vcc")

def xchg_setup(base):
    a.e(f"s_mul_i32 s22, s{S_WL}, 4608\ns_add_u32 s22, s22, {base}")
    a.e(f"v_add_u32 v{M}, s22, v{V_L16}\nv_lshrrev_b32 v{M+1}, 2, v{V_L16}\nv_add_u32 v{M+1}, s22, v{M+1}")
    a.e(f"s_lshl_b32 s22, s{S_WL}, 2\nv_add_u32 v{M+2}, s22, v{VCT}")
def attn_finish(tag, cross, ph_sig, par, s_tgt_add, LE, slow_setup):
    LH = lab("fin_H")
    a.e(f"s_cmp_ge_u32 s{S_W}, 4\ns_cbranch_scc1 {LH}")
    a.e("s_nop 9")
    for t, O in enumerate((O1, O0) if cross else (O0, O1)):
        a.e(f"ds_write_b128 v{M}, {X(O,4)} offset:{t*2304}\nds_write_b128 v{M}, {X(O+4,4)} offset:{t*2304+1024}\nds_write_b32 v{M+1}, v{O+8} offset:{t*2304+2048}")
    a.e("s_waitcnt lgkmcnt(0)")
    post(M + 2, C_P)
    a.e(f"s_branch {LE}")
    a.label(LH)
    a.e(f"s_lshl_b32 s23, s{S_IT}, 1\ns_add_u32 s23, s23, {s_tgt_add}")
    lw = lab("fin_w")
    a.label(lw)
    a.e(f"ds_read_b32 v{M+3}, v{M+2} offset:{C_P}")
    for t in range(2):
        a.e(f"ds_read_b128 {X(KBUF[0]+8*t,4)}, v{M} offset:{t*2304}\nds_read_b128 {X(KBUF[0]+8*t+4,4)}, v{M} offset:{t*2304+1024}\nds_read_b32 v{V_T0+2+t}, v{M+1} offset:{t*2304+2048}")
    a.e("s_waitcnt lgkmcnt(6)")
    a.e(f"v_readfirstlane_b32 s22, v{M+3}")
    tsig_prep(ph_sig, par)
    a.e(f"s_waitcnt lgkmcnt(0)\ns_cmp_lt_u32 s22, s23\ns_cbranch_scc1 {lw}")
    for t, O in enumerate((O0, O1)):
        a.e(f"v_add_f32 v{O+8}, v{O+8}, v{V_T0+2+t}")
    for t, O in enumerate((O0, O1)):
        for q in range(4): a.e(f"v_pk_add_f32 {X(O+2*q,2)}, {X(O+2*q,2)}, {X(KBUF[0]+8*t+2*q,2)}")
    range_check(O0 + 8, 40)
    range_check(O1 + 8, 40, True)
    a.e(f"s_cbranch_scc1 L_{tag}_slow")
    a.label(f"L_{tag}_store")
    a.e(f"v_rcp_f32 v{O0+8}, v{O0+8}\nv_rcp_f32 v{O1+8}, v{O1+8}")
    for O in (O0, O1):
        for q in range(4): a.e(f"v_pk_mul_f32 {X(O+2*q,2)}, {X(O+2*q,2)}, {X(O+8,2)} op_sel_hi:[1,0]")
        for q in range(4): a.e(f"v_cvt_pk_bf16_f32 v{O+q}, v{O+2*q}, v{O+2*q+1}")
    tstore_sig([f"buffer_store_dwordx4 {X(O0,4)}, v{V_L16}, s[8:11], s28 offen", f"buffer_store_dwordx4 {X(O1,4)}, v{V_L16}, s[8:11], s29 offen"])
    def later():
        a.label(f"L_{tag}_slow")
        a.e("s_getpc_b64 s[32:33]")
        pl = lab("pc"); a.label(pl)
        a.e(f"s_add_u32 s32, s32, L_slow-{pl}\ns_addc_u32 s33, s33, 0")
        for t in (1, 0):
            slow_setup(t)
            for r in range(4): a.e(f"v_mov_b32 v{KBUF[1]+r}, v{(Q1 if t else Q0)+r}")
            a.e("s_swappc_b64 s[34:35], s[32:33]")
            if t:
                for r in range(9): a.e(f"v_mov_b32 v{O1+r}, v{O0+r}")
        a.e(f"s_branch L_{tag}_store")
    deferred.append(later)

def slow_routine():
    a.label("L_slow")
    v_init(8)
    vfrag_addr(VV)
    a.e(f"v_lshlrev_b32 v{M+1}, 3, v{V_H}\nv_sub_u32 v{M+1}, v{V_I}, v{M+1}\nv_mov_b32 v{M}, {NEGBIG}")
    for ps in range(2):
        a.e("s_mov_b32 s23, 0\ns_mov_b32 s22, s24")
        a.label(f"L_slow_{ps}")
        a.e(f"buffer_load_dwordx4 {X(KBUF[0],4)}, v{V_L16}, s[8:11], s22 offen sc1")
        a.e("s_mov_b64 exec, s[30:31]")
        a.e(f"buffer_load_dwordx4 {X(VBUF[0],4)}, v{VV}, s[8:11], s22 offen offset:1024 sc1\nbuffer_load_dwordx4 {X(VBUF[0]+4,4)}, v{VV}, s[8:11], s22 offen offset:1536 sc1")
        a.e("s_mov_b64 exec, -1\ns_add_u32 s22, s22, s25")
        a.e(f"s_cmp_eq_u32 s23, 0\ns_cselect_b32 s40, {NEGBIG}, 0\ns_cmp_eq_u32 s23, 8\ns_cselect_b32 s41, {NEGBIG}, 0\ns_and_b32 s40, s40, s27\ns_and_b32 s41, s41, s27")
        a.e(f"v_mov_b32 v{M+2}, s40\nv_mov_b32 v{M+3}, s41")
        for r in range(16):
            kk = 16 * (r // 8) + 4 * ((r // 4) & 1) + r % 4
            a.e(f"v_cmp_le_i32 vcc, {kk}, v{M+1}\ns_nop 1\nv_cndmask_b32 v{S1+r}, v{M+2}, v{M+3}, vcc")
        a.e("s_waitcnt vmcnt(0)\ns_nop 1")
        smm(S0, KBUF[0], KBUF[1], X(S1, 16))
        a.e("s_nop 12")
        if ps == 0:
            for q in range(8): a.e(f"v_max3_f32 v{M}, v{S0+2*q}, v{S0+2*q+1}, v{M}")
        else:
            for i in range(16): a.e(f"v_sub_f32 v{S0+i}, v{S0+i}, v{M}")
            for i in range(16): a.e(f"v_exp_f32 v{S0+i}, v{S0+i}")
            a.e("s_nop 1")
            smf(O0, VBUF[0], S0); smf(O0, VBUF[0] + 4, S0 + 8)
            a.e("s_nop 12")
        a.e(f"s_add_u32 s23, s23, 1\ns_cmp_le_u32 s23, s26\ns_cbranch_scc1 L_slow_{ps}")
        if ps == 0:
            a.e(f"v_mov_b32 v{M+2}, v{M}\ns_nop 1\nv_permlane32_swap_b32 v{M}, v{M+2}\nv_max_f32 v{M}, v{M}, v{M+2}")
            for r in range(16): a.e(f"v_mov_b32 v{O0+r}, 0")
    a.e("s_setpc_b64 s[34:35]")

def qkvb_tile_H(sd):
    a.e(f"s_lshr_b32 s{sd}, s{S_WL}, 1\ns_lshl_b32 s{sd}, s{sd}, 4\ns_and_b32 s23, s{S_WL}, 1\ns_add_u32 s{sd}, s{sd}, s23")
    a.e(f"s_lshl_b32 s23, s{S_G}, 1\ns_add_u32 s{sd}, s{sd}, s23\ns_add_u32 s{sd}, s{sd}, {T_B+16}")

def phase_attna():
    a.c("================ attnA")
    LH, LJ, LE = lab("aa_H"), lab("aa_j"), lab("aa_end")
    VG = 120
    a.e("s_waitcnt lgkmcnt(0)")
    attn_init()
    for r in range(8, 16): a.e(f"v_mov_b32 v{S1+r}, 0")
    a.e(f"s_lshr_b32 s25, s{S_W}, 2\ns_lshl_b32 s22, s25, 11")
    a.e(f"v_add_u32 v{VK}, s22, v{V_L16}")
    vfrag_addr(VV)
    a.e(f"s_add_u32 s22, s22, 1024\nv_add_u32 v{VV}, s22, v{VV}")
    a.e(f"s_lshl_b32 s28, s{S_CT}, 11\ns_lshl_b32 s22, s{S_RT}, 15\ns_add_u32 s28, s28, s22")
    a.e(f"s_lshl_b32 s29, s{S_RB}, 16\ns_and_b32 s22, s{S_WL}, 1\ns_lshl_b32 s22, s22, 15\ns_add_u32 s29, s29, s22\ns_lshl_b32 s22, s{S_G}, 12\ns_add_u32 s29, s29, s22\ns_and_b32 s22, s{S_WL}, 2\ns_lshl_b32 s22, s22, 10\ns_add_u32 s29, s29, s22")
    a.e(f"s_cmp_eq_u32 s{S_IT}, 0\ns_cselect_b32 s28, s29, s28\ns_add_u32 s28, s28, {OBUF}\ns_add_u32 s29, s28, 1024")
    xchg_setup(L_RED)
    a.e(f"s_lshl_b32 s22, s25, 2\nv_add_u32 v{VG}, s22, v{VCT}\ns_lshl_b32 s26, s{S_IT1}, 2\ns_lshl_b32 s27, s{S_IT1}, 3")
    a.e(f"s_lshl_b32 s22, s{S_WL}, 11\ns_add_u32 s22, s22, {L_Q}\nv_add_u32 v{V_T0+2}, s22, v{V_L16}")
    a.e(f"s_lshl_b32 s43, s{S_WL}, 12\ns_lshl_b32 s42, s25, 11\ns_add_u32 s43, s43, s42\ns_add_u32 s43, s43, 32768\ns_add_u32 s42, s43, {KVA}\ns_add_u32 s42, s42, s{S_BUF}")
    a.e("s_getpc_b64 s[32:33]")
    pcl = lab("aa_pc")
    a.label(pcl)
    a.e(f"s_add_u32 s32, s32, L_aa_body-{pcl}\ns_addc_u32 s33, s33, 0")
    a.e(f"s_cmp_ge_u32 s{S_W}, 4\ns_cbranch_scc1 {LH}")
    a.e(f"s_add_u32 s24, s{S_CT}, {T_OA}")
    pf_setup(24)
    lp = lab("aa_pl")
    a.e(f"s_cmp_ge_u32 s{S_W}, 2\ns_cbranch_scc1 {lp}")
    a.e(f"s_and_b32 s22, s{S_RT}, 7\ns_lshl_b32 s22, s22, 4\ns_lshl_b32 s23, s{S_CB}, 2\ns_add_u32 s22, s22, s23\ns_add_u32 s22, s22, s{S_W}\ns_cmp_lg_u32 s22, 5\ns_cbranch_scc1 {LJ}")
    a.e(f"s_lshr_b32 s23, s{S_RT}, 3\ns_mul_i32 s38, s23, {FSTR}\ns_add_u32 s38, s38, {FL + F_KV*FSTR}\ns_lshl_b32 s23, s23, 3\ns_add_u32 s23, s23, {FL + F_ALL*FSTR}")
    a.e(f"s_mov_b32 s44, 0x33333333\ns_mov_b32 s45, 0\nv_mul_u32_u24 v{M+3}, {FSTR}, v{V_I}")
    tagpoll(38, "s[44:45]")
    a.e(f"v_mov_b32 v{V_T0}, s{S_TAG}\nv_mov_b32 v{V_T0+1}, s{S_TAG+1}\ns_mov_b32 exec_hi, 0")
    a.e(f"buffer_store_dwordx2 {X(V_T0,2)}, v{M+3}, s[8:11], s23 offen {ST1}")
    a.e(f"s_mov_b64 exec, -1\ns_branch {LJ}")
    a.label(lp)
    a.e(f"s_and_b32 s23, s{S_W}, 1\ns_lshl_b32 s23, s23, 14\ns_add_u32 s22, s23, {KVA}\ns_add_u32 s22, s22, s{S_BUF}")
    a.e(f"s_mul_i32 s38, s{S_RB}, {FSTR}\ns_add_u32 s38, s38, {FL + F_ALL*FSTR}")
    a.e("s_mov_b32 s41, s22")
    cwait_imm(C_H, 4, V_T0)
    a.e("s_mov_b32 s22, s41")
    tagpoll(38, "0xff")
    dma(16, 22, 23)
    a.e(f"s_branch {LJ}")
    a.label(LH)
    qkvb_tile_H(24)
    pf_setup(24)
    a.label(LJ)
    mark()
    a.e("s_waitcnt vmcnt(0) lgkmcnt(0)\ns_barrier")
    mark()
    a.e(f"ds_read_b128 {X(Q0,4)}, v{V_T0+2}\nds_read_b128 {X(KBUF[0],4)}, v{VK}\nds_read_b128 {X(Q1,4)}, v{V_T0+2} offset:1024")
    a.e(f"ds_read_b128 {X(KBUF[1],4)}, v{VK} offset:4096")
    a.e("s_mov_b64 exec, s[30:31]")
    a.e(f"ds_read_b128 {X(VBUF[0],4)}, v{VV}")
    a.e(f"ds_read_b128 {X(VBUF[0]+4,4)}, v{VV} offset:512")
    a.e("s_mov_b64 exec, -1")
    def dma2(n):
        for _ in range(n):
            a.e("s_mov_b32 m0, s43\ns_add_u32 s43, s43, 16384")
            for c in range(2): a.e(f"buffer_load_dwordx4 v{V_L16}, s[8:11], s42 offen offset:{c*1024} sc1 lds")
            a.e("s_add_u32 s42, s42, 16384")
    a.e("s_waitcnt lgkmcnt(4)")
    smm(S0, KBUF[0], Q0)
    prio = [3, 3, 3, 3, 2, 2, 1, 0]
    pfs = {3: range(0, 8), 4: range(8, 16), 5: range(16, 24), 6: range(24, 32)}
    def it0(tag):
        a.e(f"s_cmp_eq_u32 s{S_IT}, 0\ns_cbranch_scc1 L_aa_{tag}")
        a.label(f"L_aa_{tag}_ret")
    for c in range(8):
        if c == 0:
            it0("arr"); dma2(3)
        if c == 1:
            a.e("s_waitcnt vmcnt(0)")
            post(VG, C_A); it0("lead"); dma2(3); cwait(VG, C_A, 26, M + 3)
        if c == 2:
            a.e("s_waitcnt vmcnt(0)")
            post(VG, C_B)
        if c == 2: it0("warm")
        if c == 3: it0("wrdy")
        if c == 7: it0("xcc")
        if c == 4:
            post(VCT, C_D); cwait(VG, C_B, 26, M + 3)
        if c == 6:
            cwait(VCT, C_D, 27, M + 3)
            a.e(f"s_lshl_b32 s42, s{S_G}, 16\ns_lshl_b32 s43, s{S_W}, 13\ns_add_u32 s42, s42, s43\ns_add_u32 s42, s42, {T_B*32768}\ns_add_u32 s43, s43, {L_WV}")
            dma(8, 42, 43)
        for i in pfs.get(c, []): pf(i)
        if c == 0 or prio[c] != prio[c-1]: a.e(f"s_setprio {prio[c]}")
        a.e("s_swappc_b64 s[34:35], s[32:33]")
    smf(O1, VBUF[1] + 4, S1 + 8)
    mark()
    def slow_setup(t):
        a.e(f"s_add_u32 s24, s{S_BUF}, {KVA}\ns_mov_b32 s25, 2048\ns_mov_b32 s26, 63\ns_mov_b32 s27, 0")
    attn_finish("aa", False, 1, None, 1, LE, slow_setup)
    a.label(LE)
    mark()
    def body():
        a.raw(".p2align 6")
        a.label("L_aa_body")
        ex = lambda S, i: a.e(f"v_exp_f32 v{S+i}, v{S+i}")
        for t in range(4):
            c = t % 2; p = 1 - c
            for i in range(2): ex(S0, i)
            smf(O1, VBUF[p] + 4, S1 + 8)
            a.e("s_waitcnt lgkmcnt(0)")
            for i in range(2, 5): ex(S0, i)
            smm(S1, KBUF[c], Q1)
            a.e(f"ds_read_b128 {X(KBUF[c],4)}, v{VK} offset:{(t+2)*4096}")
            a.e("s_mov_b64 exec, s[30:31]")
            a.e(f"ds_read_b128 {X(VBUF[p],4)}, v{VV} offset:{(t+1)*4096}")
            a.e(f"ds_read_b128 {X(VBUF[p]+4,4)}, v{VV} offset:{(t+1)*4096+512}")
            a.e("s_mov_b64 exec, -1")
            for i in range(5, 11): ex(S0, i)
            smf(O0, VBUF[c], S0)
            for i in range(11, 16): ex(S0, i)
            for i in range(2): ex(S1, i)
            smf(O0, VBUF[c] + 4, S0 + 8)
            for i in range(2, 5): ex(S1, i)
            smm(S0, KBUF[p], Q0)
            for i in range(5, 11): ex(S1, i)
            smf(O1, VBUF[c], S1)
            for i in range(11, 16): ex(S1, i)
        a.e(f"v_add_u32 v{VK}, 16384, v{VK}\nv_add_u32 v{VV}, 16384, v{VV}")
        a.e("s_setpc_b64 s[34:35]")
    deferred.insert(0, body)
    def extras():
        a.label("L_aa_arr")
        a.e(f"s_cmp_lg_u32 s{S_W}, 0\ns_cbranch_scc1 L_aa_arr_ret")
        arrive(256)
        a.e("s_branch L_aa_arr_ret")
        a.label("L_aa_lead")
        a.e(f"s_and_b32 s22, s{S_RT}, 7\ns_lshl_b32 s22, s22, 5\ns_lshl_b32 s23, s{S_CB}, 3\ns_add_u32 s22, s22, s23\ns_add_u32 s22, s22, s{S_W}\ns_cmp_lg_u32 s22, 9\ns_cbranch_scc1 L_aa_lead_ret")
        a.e(f"s_lshr_b32 s23, s{S_RT}, 3\ns_mul_i32 s38, s23, {FSTR}\ns_add_u32 s38, s38, {FL + F_KV*FSTR + 256}\ns_lshl_b32 s23, s23, 3\ns_add_u32 s23, s23, {FL + F_ALL*FSTR + 64}")
        a.e(f"s_mov_b32 s44, -1\ns_mov_b32 s45, 0\nv_mul_u32_u24 v{M+3}, {FSTR}, v{V_I}")
        tagpoll(38, "s[44:45]")
        a.e(f"v_mov_b32 v{V_T0}, s{S_TAG}\nv_mov_b32 v{V_T0+1}, s{S_TAG+1}\ns_mov_b32 exec_hi, 0")
        a.e(f"buffer_store_dwordx2 {X(V_T0,2)}, v{M+3}, s[8:11], s23 offen {ST1}")
        a.e("s_mov_b64 exec, -1\ns_branch L_aa_lead_ret")
        a.label("L_aa_warm")
        lq = lab("aa_wr")
        a.e(f"s_cmp_lg_u32 s{S_W}, 2\ns_cbranch_scc1 {lq}")
        a.e(f"s_mul_i32 s38, s{S_RB}, {FSTR}\ns_add_u32 s38, s38, {FL + F_ALL*FSTR + 64}")
        tagpoll(38, "0xff", sleep=4)
        post(VCT, C_J2)
        a.label(lq)
        a.e(f"s_lshl_b32 s22, s25, 10\ns_add_u32 s22, s22, s28")
        a.e(f"buffer_load_dwordx4 {X(WR,4)}, v{V_L16}, s[8:11], s22 offen")
        a.e(f"s_add_u32 s22, s22, {(X0 - OBUF) & 0xffffffff}")
        a.e(f"buffer_load_dwordx4 {X(WR,4)}, v{V_L16}, s[8:11], s22 offen")
        a.e(f"s_lshl_b32 s22, s{S_RT}, 12\ns_lshl_b32 s23, s{S_CB}, 10\ns_add_u32 s22, s22, s23\ns_add_u32 s22, s22, {STP}")
        a.e(f"buffer_load_dwordx4 {X(WR,4)}, v{V_L16}, s[8:11], s22 offen")
        a.e("s_branch L_aa_warm_ret")
        a.label("L_aa_wrdy")
        cwait_imm(C_J2, 5, M + 3)
        a.e(f"s_cmp_lg_u32 s{S_W}, 3\ns_cbranch_scc1 L_aa_wrdy_ret")
        a.e(f"s_getreg_b32 s23, hwreg(HW_REG_XCC_ID, 0, 4)\ns_add_u32 s23, s23, 1\nv_mov_b32 v{V_T0+1}, s23\nv_lshlrev_b32 v{V_T0}, 9, v{V_I}")
        a.e(f"s_lshl_b32 s22, s{S_RB}, 12\ns_lshl_b32 s23, s{S_G}, 2\ns_add_u32 s22, s22, s23\ns_add_u32 s22, s22, {MBX}")
        a.e("s_mov_b64 exec, 0xff")
        a.e(f"buffer_store_dword v{V_T0+1}, v{V_T0}, s[8:11], s22 offen offset:256 {ST1}")
        a.e("s_mov_b64 exec, -1\ns_branch L_aa_wrdy_ret")
        a.label("L_aa_xcc")
        gpoll(S_MB, 256, S_IT1, "0xff")
        a.e(f"v_readfirstlane_b32 s22, v{V_T0+1}")
        a.e("s_mov_b64 exec, 0xff\ns_nop 0")
        a.e(f"v_cmp_ne_u32 vcc, s22, v{V_T0+1}")
        a.e("s_mov_b64 exec, -1")
        a.e(f"s_cmp_eq_u64 vcc, 0\ns_cselect_b32 s{S_FAST}, 1, 0")
        if "slowsync" in OPT: a.e(f"s_mov_b32 s{S_FAST}, 0")
        a.e("s_branch L_aa_xcc_ret")
    deferred.append(extras)

def phase_oproj(which):
    a.c(f"================ oproj{which}")
    LL, LE = lab("op_L"), lab("op_end")
    stage = L_XB if which == "A" else L_XH
    a.e(f"s_cmp_lt_u32 s{S_W}, 4\ns_cbranch_scc1 {LL}")
    mark()
    a.e("s_waitcnt vmcnt(0)\ns_barrier")
    mark()
    a.e(f"s_branch {LE}")
    a.label(LL)
    a.e(f"s_waitcnt lgkmcnt(0)\nv_add_u32 v{XA}, {stage}, v{V_L16}")
    for q in range(8):
        a.e(f"v_lshlrev_b32 v{RES+2*q}, 16, v{XRES+q}")
        a.e(f"v_and_b32 v{RES+2*q+1}, 0xffff0000, v{XRES+q}")
    a.e(f"s_lshl_b32 s22, s{S_RT}, 15\ns_lshl_b32 s23, s{S_CT}, 11\ns_add_u32 s26, s22, s23\ns_add_u32 s26, s26, {X0}")
    a.e(f"s_lshl_b32 s22, s{S_RT}, 12\ns_lshl_b32 s23, s{S_CT}, 8\ns_add_u32 s27, s22, s23\ns_add_u32 s27, s27, {STP}\nv_lshrrev_b32 v{V_T0+2}, 2, v{V_L16}")
    if which == "A": tsig_prep(2, None, VADR)
    else: tsig_prep(4, S_G, VADR)
    a.e(f"s_lshl_b32 s22, s{S_RT}, 15\ns_lshl_b32 s23, s{S_WL}, 13\ns_add_u32 s22, s22, s23\ns_add_u32 s22, s22, {OBUF}\ns_add_u32 s23, s23, {stage}")
    if which == "A": tpoll(1, 0x00f000f0, 0xf000f000, 0xf0f0f0f0)
    else: tpoll(3, 0xf0f0f0f0, 0xf0f0f0f0)
    dma(8, 22, 23)
    mark()
    a.e("s_waitcnt vmcnt(0)\ns_barrier")
    mark()
    gemm(steps1(ACC), "T", "reg", XA, c0=X(RES, 16))
    if which == "B":
        a.e(f"s_cmp_eq_u32 s{S_IT}, 1\ns_cbranch_scc1 L_final\ns_nop 9")
    else: a.e("s_nop 11")
    for q in range(8): a.e(f"v_cvt_pk_bf16_f32 v{XRES+q}, v{ACC+2*q}, v{ACC+2*q+1}")
    tstore([f"buffer_store_dwordx4 {X(XRES,4)}, v{V_L16}, s[8:11], s26 offen", f"buffer_store_dwordx4 {X(XRES+4,4)}, v{V_L16}, s[8:11], s26 offen offset:1024"])
    a.e(f"v_pk_mul_f32 {X(XW+2,2)}, {X(ACC,2)}, {X(ACC,2)}\nv_pk_add_f32 {X(XW,2)}, {X(ACC,2)}, {X(ACC+2,2)}")
    for q in range(1, 8):
        a.e(f"v_pk_fma_f32 {X(XW+2,2)}, {X(ACC+2*q,2)}, {X(ACC+2*q,2)}, {X(XW+2,2)}")
        if q > 1: a.e(f"v_pk_add_f32 {X(XW,2)}, {X(XW,2)}, {X(ACC+2*q,2)}")
    a.e(f"v_add_f32 v{XW}, v{XW}, v{XW+1}\nv_add_f32 v{XW+2}, v{XW+2}, v{XW+3}\ns_nop 1")
    a.e(f"v_permlane32_swap_b32 v{XW}, v{XW+2}")
    a.e(f"v_add_f32 v{XW}, v{XW}, v{XW+2}")
    tstore_sig([f"buffer_store_dword v{XW}, v{V_T0+2}, s[8:11], s27 offen"], VADR)
    a.label(LE)
    mark()

def phase_qkvb():
    a.c("================ qkvB")
    LL, LE, LV, LQ = lab("qb_L"), lab("qb_end"), lab("qb_v"), lab("qb_q")
    a.e(f"s_and_b32 s25, s{S_WL}, 1")
    a.e(f"v_add_u32 v{XA}, {L_XB}, v{V_L16}")
    a.e(f"s_cmp_lt_u32 s{S_W}, 4\ns_cbranch_scc1 {LL}")
    a.e(f"s_lshl_b32 s26, s{S_G}, 19\ns_lshl_b32 s23, s{S_RB}, 14\ns_add_u32 s26, s26, s23\ns_lshl_b32 s23, s25, 12\ns_add_u32 s26, s26, s23\ns_add_u32 s26, s26, s{S_BUF}\ns_add_u32 s26, s26, {KVB}")
    a.e(f"s_add_u32 s27, s26, 8192\ns_add_u32 s28, s23, {L_OWN}")
    qkvb_tile_H(24)
    pf_setup(S_CT)
    l1, l2 = lab("qb_h"), lab("qb_h")
    a.e(f"s_cmp_ge_u32 s{S_WL}, 2\ns_cbranch_scc1 {l1}")
    cs_loads_T(24)
    kperm_addr(VADR)
    stat_addr_T()
    a.e(f"s_branch {l2}")
    a.label(l1)
    cs_loads_N(24)
    vfrag_addr(VADR)
    a.e(f"v_lshrrev_b32 v{VADR+1}, 4, v{V_I}")
    a.e(f"v_lshl_add_u32 v{VADR}, v{VADR+1}, 11, v{VADR}")
    a.label(l2)
    a.e(f"v_add_u32 v{VADR+1}, s28, v{VADR}")
    a.e(f"s_lshl_b32 s22, s{S_RB}, 16\ns_lshl_b32 s23, s{S_WL}, 13\ns_add_u32 s22, s22, s23\ns_add_u32 s22, s22, {X0}\ns_add_u32 s23, s23, {L_XB}")
    a.e("s_add_u32 s24, s22, 32768\ns_add_u32 s29, s23, 32768")
    tpoll(2, 0x0f0f0f0f, 0x0f0f0f0f)
    dma(8, 22, 23)
    dma(8, 24, 29)
    a.e("s_waitcnt vmcnt(8)\ns_barrier")
    mark(); mark()
    a.e("s_setprio 2")
    a.e(f"s_cmp_ge_u32 s{S_WL}, 2\ns_cbranch_scc1 {LV}")
    st2 = steps1(ACC) + steps1(ACC + 16, 32768)
    hooks = {("pre", 32): lambda: a.e("s_waitcnt vmcnt(0)\ns_barrier"), 60: bar}
    def outK(r):
        return [f"buffer_store_dwordx4 {X(ACC+16*r+4*e,4)}, v{VADR}, s[8:11], s{26+r} offen offset:{e*2048} {ST1}" for e in range(2)] + \
               [f"ds_write_b128 v{VADR+1}, {X(ACC+16*r+4*e,4)} offset:{(1-r)*8192+e*2048}" for e in range(2)]
    def outV(r):
        return [f"buffer_store_dwordx4 {X(ACC+16*r+4*m_,4)}, v{VADR}, s[8:11], s{26+r} offen offset:{1024+m_*512} {ST1}" for m_ in range(2)] + \
               [f"ds_write_b128 v{VADR+1}, {X(ACC+16*r+4*m_,4)} offset:{(1-r)*8192+1024+m_*512}" for m_ in range(2)]
    stats_read_T(2)
    gemm(st2, "T", "reg", XA, hooks, epi_T_list(ACC, MEAN0, RSTD0) + outK(0), fill_from=36)
    a.e("s_nop 11")
    emit(epi_T_list(ACC + 16, MEAN1, RSTD1) + outK(1))
    a.e(f"s_branch {LE}")
    a.label(LV)
    emit(epi_N_read_list(0, WW, WW + 16))
    gemm(st2, "N", "reg", XA, hooks, epi_N_list(ACC, WW, WW + 16) + outV(0) + epi_N_read_list(1, WW, WW + 16), fill_from=36)
    a.e("s_nop 10\ns_waitcnt lgkmcnt(0)")
    emit(epi_N_list(ACC + 16, WW, WW + 16) + outV(1))
    a.e(f"s_branch {LE}")
    a.label(LL)
    a.e(f"s_add_u32 s24, s{S_CT}, {T_OB}")
    pf_setup(24)
    a.e(f"s_lshr_b32 s26, s{S_WL}, 1")
    a.e(f"s_lshl_b32 s24, s{S_G}, 1\ns_add_u32 s24, s24, s26\ns_add_u32 s24, s24, {T_B}")
    cs_loads_T(24)
    a.e(f"s_lshl_b32 s23, s26, 15\ns_add_u32 s23, s23, {L_WV}\nv_add_u32 v{WA}, s23, v{V_L16}")
    a.e(f"s_lshl_b32 s23, s25, 15\nv_add_u32 v{XA}, s23, v{XA}")
    a.e(f"s_lshl_b32 s22, s26, 12\ns_lshl_b32 s23, s25, 10\ns_add_u32 s22, s22, s23\ns_add_u32 s22, s22, {L_Q}\nv_add_u32 v{VADR}, s22, v{V_L16}")
    stat_addr_T(25)
    a.e(f"s_cmp_lt_u32 s{S_WL}, 2\ns_cbranch_scc1 {LQ}")
    a.e(f"s_lshl_b32 s24, s{S_RB}, 13\ns_lshl_b32 s23, s25, 12\ns_add_u32 s24, s24, s23\ns_add_u32 s24, s24, {STP}\nv_lshrrev_b32 v{V_T0+2}, 2, v{V_L16}")
    tpoll(2, 0x0f0f0f0f, 0x0f0f0f0f)
    stats_wave(24, 25)
    a.label(LQ)
    mark()
    a.e("s_waitcnt vmcnt(0)\ns_barrier")
    mark()
    stats_read_T(1)
    a.e("s_barrier\ns_barrier")
    gemm(steps1(ACC), "T", "lds", XA)
    for i in range(6): pf(i)
    a.e("s_nop 4")
    emit(epi_T_list(ACC, MEAN0, RSTD0, f32(QSCALE)))
    for e in range(2):
        a.e(f"ds_write_b128 v{VADR}, {X(ACC+4*e,4)} offset:{e*2048}")
    for i in range(6, NPF_L): pf(i)
    a.label(LE)
    mark()

def phase_attnb():
    a.c("================ attnB")
    LE = lab("ab_end")
    a.e("s_setprio 0\ns_waitcnt lgkmcnt(0)")
    attn_init()
    a.e(f"s_lshr_b32 s25, s{S_W}, 2\ns_xor_b32 s26, s25, 1")
    a.e(f"v_lshlrev_b32 v{V_T0}, 3, v{V_H}")
    a.e(f"v_sub_u32 v{V_T0}, v{V_I}, v{V_T0}")
    a.e(f"s_cmp_eq_u32 s25, 0\ns_cselect_b32 s22, {NEGBIG}, 0\ns_cselect_b32 s23, 0, {NEGBIG}")
    a.e(f"v_mov_b32 v{M+2}, s22\nv_mov_b32 v{M+3}, s23")
    for r in range(16):
        kk = 16 * (r // 8) + 4 * ((r // 4) & 1) + r % 4
        a.e(f"v_cmp_le_i32 s[{36+2*(r%3)}:{37+2*(r%3)}], {kk}, v{V_T0}")
        if r >= 2: a.e(f"v_cndmask_b32 v{S1+r-2}, v{M+2}, v{M+3}, s[{36+2*((r-2)%3)}:{37+2*((r-2)%3)}]")
    for r in (14, 15): a.e(f"v_cndmask_b32 v{S1+r}, v{M+2}, v{M+3}, s[{36+2*(r%3)}:{37+2*(r%3)}]")
    a.e(f"s_lshl_b32 s22, s26, 16\ns_lshl_b32 s23, s{S_WL}, 11\ns_add_u32 s43, s22, s23")
    a.e(f"v_add_u32 v{VK}, s43, v{V_L16}")
    vfrag_addr(VV)
    a.e(f"v_add_u32 v{VV}, s43, v{VV}")
    a.e(f"s_lshl_b32 s28, s{S_G}, 2\ns_add_u32 s28, s28, s{S_WL}\ns_lshl_b32 s28, s28, 10\ns_lshl_b32 s22, s{S_RB}, 16\ns_add_u32 s28, s28, s22\ns_add_u32 s28, s28, {OBUF}\ns_add_u32 s29, s28, 32768")
    a.e(f"s_lshl_b32 s22, s26, 10\ns_add_u32 s22, s22, s23\ns_add_u32 s22, s22, {L_Q}\nv_add_u32 v{V_T0+2}, s22, v{V_L16}\nv_xor_b32 v{V_T0+3}, 1024, v{V_T0+2}")
    a.e(f"s_lshl_b32 s42, s{S_G}, 19\ns_lshl_b32 s22, s{S_RB}, 14\ns_add_u32 s42, s42, s22\ns_add_u32 s42, s42, s23\ns_add_u32 s42, s42, s{S_BUF}\ns_add_u32 s42, s42, {KVB - 65536}")
    a.e(f"s_min_u32 s27, s{S_RB}, 4\ns_lshl_b32 s44, 2, s27\ns_sub_u32 s44, s44, 1\ns_cmp_eq_u32 s25, 0\ns_cselect_b32 s22, 6, 28\ns_and_b32 s44, s44, s22\ns_mov_b32 s45, 0")
    a.e(f"s_lshl_b32 s22, s{S_RB}, 1\ns_mul_i32 s23, s25, 3\ns_sub_i32 s22, s22, s23\ns_max_i32 s22, s22, 0\ns_min_i32 s27, s22, 3")
    lsg = lab("ab_sig")
    a.e(f"s_cmp_eq_u32 s25, 0\ns_cbranch_scc1 {lsg}")
    a.e(f"v_mul_u32_u24 v{M}, 4100, v{V_I}\nv_mov_b32 v{M+1}, s{S_IT1}")
    a.e(f"s_sub_u32 s23, 31, s{S_RB}\ns_min_u32 s23, s23, 4\ns_lshl_b32 s40, 2, s23\ns_sub_u32 s40, s40, 1\ns_mov_b32 s41, 0")
    a.e("s_mov_b64 exec, 1")
    a.e("s_waitcnt vmcnt(0)")
    a.e(f"ds_add_rtn_u32 v{V_T0+1}, v{VCT}, v{VONE} offset:{C_K}")
    a.e("s_waitcnt lgkmcnt(0)")
    a.e(f"v_readfirstlane_b32 s22, v{V_T0+1}")
    a.e("s_mov_b64 exec, -1\ns_nop 2")
    a.e(f"s_and_b32 s22, s22, 3\ns_cmp_lg_u32 s22, 3\ns_cbranch_scc1 {lsg}")
    a.e("s_mov_b64 exec, s[40:41]")
    a.e(f"buffer_store_dword v{M+1}, v{M}, s[8:11], s{S_MB} offen offset:384 {ST1}")
    a.e("s_mov_b64 exec, -1")
    a.label(lsg)
    xchg_setup(L_REDB)
    mark()
    a.e("s_barrier")
    a.e(f"ds_read_b128 {X(Q0,4)}, v{V_T0+2}\nds_read_b128 {X(Q1,4)}, v{V_T0+3}")
    def pollkb():
        l = lab("ab_np")
        a.e(f"s_cmp_eq_u32 s44, 0\ns_cbranch_scc1 {l}")
        gpoll(S_MB, 384, S_IT1, "s[44:45]", sleep=2)
        a.label(l)
    def dma_tile(src_off, lds_off):
        a.e(f"s_add_u32 s22, s42, {src_off}\ns_add_u32 s23, s43, {lds_off}\ns_mov_b32 m0, s23\ns_nop 0")
        for c in range(2): a.e(f"buffer_load_dwordx4 v{V_L16}, s[8:11], s22 offen offset:{c*1024} sc1 lds")
    LP1, LP2, LMID = lab("ab_p1"), lab("ab_p2"), lab("ab_mid")
    a.e(f"s_cmp_eq_u32 s25, 0\ns_cbranch_scc1 {LP1}")
    pollkb()
    for i in range(5): dma_tile(i * 8192, i * 8192)
    a.e(f"s_cmp_lt_u32 s{S_RB}, 4\ns_cbranch_scc1 {LMID}")
    a.e("s_waitcnt vmcnt(6)")
    a.label(LP1)
    mark()
    def rdK(i): a.e(f"ds_read_b128 {X(KBUF[i%2],4)}, v{VK} offset:{i*8192}")
    def rdV(i):
        a.e("s_mov_b64 exec, s[30:31]")
        a.e(f"ds_read_b128 {X(VBUF[i%2],4)}, v{VV} offset:{i*8192+1024}")
        a.e(f"ds_read_b128 {X(VBUF[i%2]+4,4)}, v{VV} offset:{i*8192+1536}")
        a.e("s_mov_b64 exec, -1")
    SS = (S0, S1); OO = (O0, O1); QQ = (Q0, Q1)
    def tile(u): return (u + 1) >> 1
    def unit(u, first, last, extra=None):
        Sc, Sp = SS[u % 2], SS[1 - u % 2]
        ex = lambda i: a.e(f"v_exp_f32 v{Sc+i}, v{Sc+i}")
        for i in range(2): ex(i)
        if not first: smf(OO[(u-1) % 2], VBUF[tile(u-1) % 2] + 4, Sp + 8)
        a.e("s_waitcnt lgkmcnt(0)")
        for i in range(2, 5): ex(i)
        if not last: smm(Sp, KBUF[tile(u+1) % 2], QQ[(u+1) % 2])
        if extra: extra()
        for i in range(5, 11): ex(i)
        smf(OO[u % 2], VBUF[tile(u) % 2], Sc)
        for i in range(11, 16): ex(i)
    rdK(0); rdK(1); rdV(0); rdV(1)
    a.e("s_waitcnt lgkmcnt(5)")
    smm(S0, KBUF[0], Q0, X(S1, 16))
    a.e("s_waitcnt lgkmcnt(4)")
    smm(S1, KBUF[1], Q1, X(S1, 16))
    a.e("s_nop 9")
    unit(0, True, True)
    unit(1, False, False)
    unit(2, False, True)
    a.e("s_cmp_lg_u32 s25, 0\ns_nop 0")
    smf(O0, VBUF[1] + 4, S0 + 8)
    a.e(f"s_cbranch_scc1 {LP2}")
    pollkb()
    for i in range(2, 5): dma_tile((9 - i) * 8192, i * 8192)
    a.label(LP2)
    a.e(f"s_lshl_b32 s22, s{S_IT}, 1\ns_or_b32 s22, s22, s26\ns_cmp_eq_u32 s22, 0\ns_cselect_b64 vcc, -1, 0")
    mark()
    a.e("s_waitcnt vmcnt(0)")
    mark()
    def pfg(lo, hi):
        l = lab("ab_pf")
        a.e(f"s_cbranch_vccz {l}")
        for i in range(lo, hi): pf(i)
        a.label(l)
    def tail_loads():
        l = lab("ab_wkv")
        a.e(f"s_cmp_lg_u32 s25, 0\ns_cbranch_scc1 {l}")
        for i in range(NPF_L, 32): pf(i)
        a.e(f"s_lshr_b32 s22, s{S_CB}, 1\ns_or_b32 s22, s22, s{S_IT}\ns_cmp_lg_u32 s22, 0\ns_cbranch_scc1 {l}")
        a.e(f"s_lshl_b32 s23, s{S_WL}, 13\ns_add_u32 s22, s23, {T_KV*32768}\ns_add_u32 s23, s23, {L_WKV}")
        dma(8, 22, 23)
        a.label(l)
    a.e("s_cmp_eq_u32 s27, 0\ns_cbranch_scc1 L_ab_exit0")
    rdK(2); rdV(2)
    a.e("s_waitcnt lgkmcnt(2)")
    smm(S1, KBUF[0], Q1)
    a.e("s_nop 11")
    PF = [0, 6, 11, NPF_H]
    for u in range(3, 9):
        def extra(u=u):
            if u in (3, 5): rdK(tile(u) + 1); rdV(tile(u) + 1)
            if u == 4: tail_loads()
            if u - 3 < 3: pfg(PF[u-3], PF[u-2])
        unit(u, u == 3, u == 8, extra)
        if u in (4, 6):
            a.e(f"s_cmp_eq_u32 s27, {(u-2)//2}\ns_cbranch_scc1 L_ab_exit{(u-2)//2}")
    a.e("s_nop 1")
    smf(O0, VBUF[0] + 4, S0 + 8)
    a.label("L_ab_fin")
    mark()
    def slow_setup(t):
        a.e(f"s_add_u32 s24, s42, {(8+t)*8192}\ns_mov_b32 s25, -8192\ns_lshl_b32 s26, s{S_RB}, 1\ns_add_u32 s26, s26, {t}\ns_min_u32 s26, s26, 8\ns_mov_b32 s27, -1")
    attn_finish("ab", True, 3, None, 2, LE, slow_setup)
    a.label(LE)
    mark()
    def rest():
        a.label(LMID)
        mark()
        a.e(f"s_sub_u32 s22, 3, s27\ns_lshl_b32 s22, s22, 13\nv_add_u32 v{VK}, s22, v{VK}\nv_add_u32 v{VV}, s22, v{VV}\ns_branch {LP2}")
        a.label("L_ab_exit0")
        tail_loads()
        pfg(0, NPF_H)
        a.e("s_branch L_ab_fin")
        a.label("L_ab_exit1")
        smf(O0, VBUF[0] + 4, S0 + 8)
        pfg(PF[2], NPF_H)
        a.e("s_branch L_ab_fin")
        a.label("L_ab_exit2")
        smf(O0, VBUF[1] + 4, S0 + 8)
        a.e("s_branch L_ab_fin")
    deferred.append(rest)

def dot8(regs, acc, kind):
    for k, r in enumerate(regs):
        o = "s39" if kind == "sum" else f"v{r}"
        a.e(f"v_dot2_f32_bf16 v{acc+k%4}, v{r}, {o}, v{acc+k%4}")
def tr_addr(vd, s_base):
    a.e(f"v_bfe_u32 v{vd}, v{V_L16}, 6, 2\nv_lshl_add_u32 v{vd}, v{V_H}, 2, v{vd}\nv_lshlrev_b32 v{vd}, 6, v{vd}")
    a.e(f"v_bfe_u32 v{V_T0}, v{V_L16}, 8, 1\nv_lshl_add_u32 v{vd}, v{V_T0}, 5, v{vd}\nv_bfe_u32 v{V_T0}, v{V_L16}, 4, 2\nv_lshl_add_u32 v{vd}, v{V_T0}, 3, v{vd}\nv_add_u32 v{vd}, s{s_base}, v{vd}")
def cwait_imm(off, n, vt):
    l = lab("cw")
    a.label(l)
    a.e(f"ds_read_b32 v{vt}, v{VCT} offset:{off}\ns_waitcnt lgkmcnt(0)\nv_readfirstlane_b32 s22, v{vt}\ns_nop 0\ns_cmp_lt_u32 s22, {n}\ns_cbranch_scc1 {l}")

def start_phase():
    XF, WF_, SA = 48, 80, 32
    VO = 96
    LH = lab("st_H")
    def x_setup(vo, par_flip):
        a.e(f"v_lshrrev_b32 v16, 8, v{V_L16}\nv_lshlrev_b32 v17, 4, v16\nv_and_b32 v18, 0xf0, v{V_L16}\nv_xor_b32 v17, v17, v18\nv_lshl_add_u32 v{vo}, v16, 10, v17")
        a.e(f"v_xor_b32 v{vo+1}, 64, v{vo}\nv_xor_b32 v{vo+2}, 0x80, v{vo}\nv_xor_b32 v{vo+3}, 0xc0, v{vo}")
        a.e(f"s_lshl_b32 s24, s{S_RT}, 15\ns_lshl_b32 s23, s{S_WL}, 8\ns_add_u32 s24, s24, s23")
        if par_flip: a.e("s_xor_b32 s24, s24, 0x8000")
        a.e(f"s_lshl_b32 s25, s{S_WL}, 13\ns_and_b32 s23, s24, 0x8000\ns_add_u32 s25, s25, s23\ns_add_u32 s25, s25, {L_X2}")
    def xdma(vo):
        a.e("s_mov_b32 s23, s25")
        for j in range(8):
            a.e("s_mov_b32 m0, s23\ns_add_u32 s23, s23, 1024")
            a.e(f"buffer_load_dwordx4 v{vo+j%4}, s[64:67], s24 offen lds")
            a.e("s_add_u32 s24, s24, 4096")
    def x_addrs(va, vw):
        a.e(f"v_lshlrev_b32 v22, 8, v{V_I}\nv_lshl_add_u32 v22, v{V_H}, 3, v22\nv_and_b32 v21, 0xf0, v{V_L16}\nv_or_b32 v22, v22, v21\nv_add_u32 v22, s25, v22\nv_add_u32 v{vw}, s25, v{V_L16}")
        for c in range(16): a.e(f"v_xor_b32 v{va+c}, {c<<4}, v22")
    def conv_dot():
        for r in range(32):
            a.e(f"v_dot2_f32_bf16 v{SA+r%4}, v{XF+r}, s39, v{SA+r%4}\nv_dot2_f32_bf16 v{SA+4+r%4}, v{XF+r}, v{XF+r}, v{SA+4+r%4}")
    def conv_red():
        a.e(f"v_add_f32 v{SA}, v{SA}, v{SA+1}\nv_add_f32 v{SA+2}, v{SA+2}, v{SA+3}\nv_add_f32 v{SA+4}, v{SA+4}, v{SA+5}\nv_add_f32 v{SA+6}, v{SA+6}, v{SA+7}")
        a.e(f"v_add_f32 v{SA}, v{SA}, v{SA+2}\nv_add_f32 v{SA+4}, v{SA+4}, v{SA+6}\ns_nop 1\nv_permlane32_swap_b32 v{SA}, v{SA+4}\nv_add_f32 v{SA}, v{SA}, v{SA+4}")
    def fin_stats(src):
        a.e(f"v_mul_f32 v{MEAN0}, {f32(1/512)}, v{src}\ns_nop 0\nv_mov_b32 v{RSTD0}, v{MEAN0}\ns_nop 1")
        a.e(f"v_permlane32_swap_b32 v{MEAN0}, v{RSTD0}")
        a.e(f"v_fma_f32 v{RSTD0}, -v{MEAN0}, v{MEAN0}, v{RSTD0}\nv_max_f32 v{RSTD0}, 0, v{RSTD0}\nv_add_f32 v{RSTD0}, {f32(1e-5)}, v{RSTD0}\nv_rsq_f32 v{RSTD0}, v{RSTD0}")
    def sm_addrs():
        a.e(f"s_mul_i32 s23, s{S_WL}, 768\ns_add_u32 s23, s23, {L_SM}\nv_lshrrev_b32 v{VADR+2}, 2, v{V_L16}\nv_add_u32 v{VADR+3}, {L_SM}, v{VADR+2}\nv_add_u32 v{VADR+2}, s23, v{VADR+2}")
    a.e(f"s_cmp_ge_u32 s{S_W}, 4\ns_cbranch_scc1 {LH}")
    VO = 128
    x_setup(VO, False)
    a.e(f"s_lshl_b32 s29, s{S_WL}, 12\ns_add_u32 s26, s29, {L_WRAW}")
    a.e("s_waitcnt lgkmcnt(0)")
    a.e("s_mov_b32 s66, 0x200000\ns_mov_b32 s67, 0x20000")
    ep_load()
    lt = lab("st_t")
    a.e(f"s_lshl_b32 s23, s{S_W}, 2\ns_or_b32 s23, s23, s{S_CB}\ns_cmp_lg_u32 s23, 2\ns_cbranch_scc1 {lt}")
    a.e(f"s_bitcmp1_b32 s{S_RT}, 0\ns_cselect_b32 s80, s68, s70\ns_cselect_b32 s81, s69, s71\ns_cselect_b32 s82, s4, s6\ns_cselect_b32 s83, s5, s7\ns_bitcmp1_b32 s{S_RB}, 0\ns_cselect_b32 s80, s80, s82\ns_cselect_b32 s81, s81, s83")
    a.e(f"global_load_dword v125, v{V_L16}, s[80:81]")
    a.label(lt)
    xdma(VO)
    a.e(f"s_cmp_eq_u32 s{S_CB}, 0\ns_cselect_b32 s80, s68, s70\ns_cselect_b32 s81, s69, s71\ns_mov_b32 s82, 0x4000\ns_mov_b32 s83, 0x20000\ns_mov_b32 m0, s26")
    lnone, lprep = lab("st_none"), lab("st_prep")
    a.e(f"s_mov_b32 s41, 0\ns_mov_b32 s44, s26\nv_mov_b32 v160, 0\ns_cmp_ge_u32 s{S_CB}, 2\ns_cbranch_scc1 {lprep}")
    for j in range(4): a.e(f"buffer_load_dwordx4 v{V_L16}, s[80:83], s29 offen offset:{j*1024} lds")
    a.label(lnone)
    VP = 160
    def src_dma():
        l1 = lab("st_sd")
        a.e(f"s_cmp_lg_u32 s43, {T_KV}\ns_cbranch_scc1 {l1}")
        a.e("s_mov_b32 s72, s68\ns_mov_b32 s73, s69\ns_mov_b32 s74, 0x4000\ns_mov_b32 s75, 0x20000")
        a.e("s_mov_b32 s23, s44\ns_mov_b32 s22, s42\ns_mov_b32 exec_lo, 0x33333333\ns_mov_b32 exec_hi, 0x33333333")
        for j in range(4):
            a.e("s_mov_b32 m0, s23\ns_add_u32 s23, s23, 1024")
            a.e(f"buffer_load_dwordx4 v{VP}, s[72:75], s22 offen lds")
            a.e("s_add_u32 s22, s22, s38")
        a.e("s_waitcnt vmcnt(0)\ns_mov_b32 exec_lo, 0xcccccccc\ns_mov_b32 exec_hi, 0xcccccccc")
        a.label(l1)
        a.e("s_mov_b32 s23, s44")
        for j in range(4):
            a.e("s_mov_b32 m0, s23\ns_add_u32 s23, s23, 1024")
            a.e(f"buffer_load_dwordx4 v{VP}, s[80:83], s42 offen lds")
            a.e("s_add_u32 s42, s42, s38")
        a.e("s_mov_b64 exec, -1")
    def prep_start():
        a.label(lprep)
        a.e(f"s_lshl_b32 s43, s{S_RT}, 1\ns_add_u32 s43, s43, s{S_CB}\ns_sub_u32 s43, s43, 2")
        a.e(f"s_cmp_eq_u32 s{S_WL}, 0\ns_cselect_b32 s12, s72, s78\ns_cselect_b32 s13, s73, s79\ns_cmp_ge_u32 s{S_WL}, 2\ns_cselect_b32 s12, s76, s12\ns_cselect_b32 s13, s77, s13\ns_movk_i32 s23, 4096\ns_cselect_b32 s23, 6144, s23")
        a.e(f"s_cselect_b32 s22, 1, 0\ns_lshl_b32 s27, s43, s22\ns_and_b32 s22, s22, s{S_WL}\ns_add_u32 s27, s27, s22\ns_mul_i32 s27, s27, s23\ns_add_u32 s14, s27, s23\ns_mov_b32 s15, 0x20000\nv_lshlrev_b32 v21, 3, v{V_L16}")
        a.e(f"buffer_load_dword v{VP+1}, v21, s[12:15], s27 offen")
        a.e(f"s_cmp_ge_u32 s43, {T_N}\ns_cbranch_scc1 {lnone}")
        l2 = lab("st_src")
        a.e(f"s_mov_b32 s41, 1\ns_mov_b32 s28, 32\ns_mov_b32 s42, 0\ns_cmp_eq_u32 s43, {T_KV}\ns_cbranch_scc1 {l2}")
        a.e("s_mov_b32 s82, 0x80000\ns_mov_b32 s28, 1024")
        a.e(f"s_mov_b32 s80, s60\ns_mov_b32 s81, s61\ns_lshl_b32 s42, s43, 6\ns_cmp_lt_u32 s43, {T_KV}\ns_cbranch_scc1 {l2}")
        a.e(f"s_mov_b32 s80, s72\ns_mov_b32 s81, s73\ns_sub_u32 s42, s43, {T_OA}\ns_lshl_b32 s42, s42, 6\ns_cmp_lt_u32 s43, {T_B}\ns_cbranch_scc1 {l2}")
        a.e(f"s_mov_b32 s80, s78\ns_mov_b32 s81, s79\ns_sub_u32 s42, s43, {T_OB}\ns_lshl_b32 s42, s42, 6\ns_cmp_ge_u32 s43, {T_OB}\ns_cbranch_scc1 {l2}")
        a.e(f"s_mov_b32 s80, s76\ns_mov_b32 s81, s77\ns_mov_b32 s82, 0x180000\ns_mov_b32 s28, 3072\ns_sub_u32 s42, s43, {T_B}\ns_lshl_b32 s42, s42, 6")
        a.label(l2)
        a.e(f"v_lshrrev_b32 v{VP}, 6, v{V_L16}\nv_mul_lo_u32 v{VP}, v{VP}, s28\ns_cmp_eq_u32 s28, 32\ns_cselect_b32 s23, 16, 48\nv_and_b32 v21, s23, v{V_L16}\nv_add_u32 v{VP}, v{VP}, v21")
        a.e(f"s_lshl_b32 s23, s{S_WL}, 7\ns_mul_i32 s23, s23, s28\ns_add_u32 s42, s42, s23\ns_lshl_b32 s38, s28, 4")
        a.e(f"s_branch {lnone}")
    deferred.append(prep_start)
    common_srds()
    x_addrs(VO + 4, XA)
    a.e(f"s_mov_b32 s39, {ONES2}")
    a.e(f"v_bfe_u32 v{WA}, v{V_L16}, 6, 2\nv_lshl_add_u32 v{WA}, v{V_H}, 2, v{WA}\nv_lshlrev_b32 v{WA}, 5, v{WA}\nv_bfe_u32 v21, v{V_L16}, 4, 2\nv_lshl_add_u32 v{WA}, v21, 3, v{WA}\nv_add_u32 v{WA}, s26, v{WA}")
    a.e(f"v_add_u32 v{VADR+1}, s26, v{V_L16}")
    sm_addrs()
    a.e(f"s_and_b32 s36, s{S_G}, 1\ns_lshl_b32 s23, s36, 2\nv_add_u32 v{MEAN1}, s23, v{VCT}")
    a.e(f"s_lshl_b32 s23, s36, 8\ns_add_u32 s23, s23, {L_STAT}\nv_lshlrev_b32 v{V_T0+2}, 2, v{V_I}\nv_add_u32 v{V_T0+2}, s23, v{V_T0+2}\nv_lshlrev_b32 v{V_T0+3}, 4, v{V_H}\nv_add_u32 v{V_T0+3}, s23, v{V_T0+3}")
    kva_dest()
    for q in range(12): a.e(f"v_mov_b32 v{SA+q}, 0")
    set_tag()
    a.e("s_setprio 3\ns_barrier")
    mark()
    lw5 = lab("st_w5")
    a.e(f"s_waitcnt vmcnt(1)\ns_cmp_ge_u32 s{S_CB}, 2\ns_cbranch_scc1 {lw5}")
    a.e("s_waitcnt vmcnt(0)")
    a.label(lw5)
    mark()
    for c in range(16): a.e(f"ds_read_b64 {X(XF+2*c,2)}, v{VO+4+c}")
    a.e("s_waitcnt lgkmcnt(0)")
    for k in range(8):
        for h2 in range(2): a.e(f"ds_read_b64_tr_b16 {X(WF_+4*k+2*h2,2)}, v{WA} offset:{k*512+h2*256}")
    conv_dot()
    lv, lj = lab("st_v"), lab("st_j")
    a.e("s_waitcnt lgkmcnt(0)")
    a.e(f"s_cmp_ge_u32 s{S_CB}, 2\ns_cbranch_scc1 {lj}")
    dot8(range(WF_, WF_ + 32), SA + 8, "sum")
    a.e(f"s_cmp_eq_u32 s{S_CB}, 1\ns_cbranch_scc1 {lv}")
    for k in range(8):
        a.e(f"v_mfma_f32_32x32x16_bf16 {X(ACC,16)}, {X(WF_+4*k,4)}, {X(XF+4*k,4)}, {'0' if k == 0 else X(ACC,16)}")
    a.e(f"s_branch {lj}")
    a.label(lv)
    for k in range(8):
        a.e(f"v_mfma_f32_32x32x16_bf16 {X(ACC,16)}, {X(XF+4*k,4)}, {X(WF_+4*k,4)}, {'0' if k == 0 else X(ACC,16)}")
    a.label(lj)
    mark()
    conv_red()
    a.e(f"v_add_f32 v{SA+8}, v{SA+8}, v{SA+9}\nv_add_f32 v{SA+10}, v{SA+10}, v{SA+11}\nv_add_f32 v{SA+1}, v{SA+8}, v{SA+10}")
    def fragw():
        for k in range(8): a.e(f"ds_write_b128 v{XA}, {X(XF+4*k,4)} offset:{k*1024}")
    lw0, l2nd = lab("st_w0"), lab("st_2nd")
    a.e(f"s_cmp_eq_u32 s{S_W}, 0\ns_cbranch_scc1 {lw0}")
    a.e(f"ds_write_b32 v{VADR+2}, v{SA}\nds_write_b32 v{VADR+2}, v{SA+1} offset:256")
    lsk = lab("st_sk")
    a.e(f"s_cmp_ge_u32 s{S_CB}, 2\ns_cbranch_scc1 {lsk}")
    for q in range(4): a.e(f"ds_write_b128 v{VADR+1}, {X(ACC+4*q,4)} offset:{q*1024}")
    a.label(lsk)
    post(VCT, C_J)
    if "gate" in OPT: cwait_imm(C_J, 4, V_T0)
    fragw()
    post(MEAN1, C_X)
    mark(); mark()
    a.e(f"s_branch {l2nd}")
    a.label(lw0)
    if "gate" not in OPT: fragw()
    cwait_imm(C_J, 3, V_T0)
    mark()
    for w_ in range(3): a.e(f"ds_read2st64_b32 {X(SA+2+2*w_,2)}, v{VADR+2} offset0:{3*(w_+1)} offset1:{3*(w_+1)+1}")
    pr = [176, 192, 80] if "gate" in OPT else [48, 64, 80]
    for w_ in range(3):
        for q in range(4): a.e(f"ds_read_b128 {X(pr[w_]+4*q,4)}, v{VADR+1} offset:{(w_+1)*4096+q*1024}")
    a.e("s_waitcnt lgkmcnt(12)")
    for w_ in range(3): a.e(f"v_add_f32 v{SA}, v{SA}, v{SA+2+2*w_}\nv_add_f32 v{SA+1}, v{SA+1}, v{SA+3+2*w_}")
    a.e(f"v_mov_b32 v{SA+2}, v{SA+1}")
    fin_stats(SA)
    a.e(f"v_permlane32_swap_b32 v{SA+1}, v{SA+2}\nv_lshlrev_b32 v{V_T0}, 2, v{V_I}\nv_add_f32 v{SA+1}, v{SA+1}, v{SA+2}")
    a.e(f"ds_write_b32 v{V_T0+2}, v{MEAN0}\nds_write_b32 v{V_T0+2}, v{RSTD0} offset:128")
    a.e(f"v_add_u32 v{V_T0}, {L_CSH+512}, v{V_T0}\nv_lshlrev_b32 v{V_T0+1}, 4, v{V_H}\nv_add_u32 v{SA+3}, {L_CSH+512}, v{V_T0+1}")
    a.e(f"ds_write_b32 v{V_T0}, v{SA+1}")
    if "gate" not in OPT: post(MEAN1, C_X)
    lv2, la, lnj = lab("st_v2"), lab("st_arr"), lab("st_nj")
    a.e(f"s_cmp_ge_u32 s{S_CB}, 2\ns_cbranch_scc1 {lnj}")
    a.e(f"s_cmp_eq_u32 s{S_CB}, 1\ns_cbranch_scc1 {lv2}")
    for g in range(2): a.e(f"ds_read_b128 {X(RES+4*g,4)}, v{SA+3} offset:{32*g}")
    kperm_addr(VADR)
    a.e("s_waitcnt lgkmcnt(5)")
    for w_ in range(3):
        for r in range(8): a.e(f"v_add_f32 v{ACC+r}, v{ACC+r}, v{pr[w_]+r}")
    a.e("s_waitcnt lgkmcnt(0)")
    emit(epi_T_list(ACC, MEAN0, RSTD0, None, 8))
    a.e(f"buffer_store_dwordx4 {X(ACC,4)}, v{VADR}, s[8:11], s27 offen {ST1}")
    a.e(f"s_branch {la}")
    a.label(lv2)
    a.e(f"v_mov_b32 v{MEAN0}, v{SA+1}\ns_waitcnt lgkmcnt(0)")
    emit(epi_N_read_list(0, 32, 96))
    vfrag_addr(VADR)
    for w_ in range(3):
        for q in range(8): a.e(f"v_pk_add_f32 {X(ACC+2*q,2)}, {X(ACC+2*q,2)}, {X(pr[w_]+2*q,2)}")
    a.e("s_waitcnt lgkmcnt(0)")
    emit(epi_N_list(ACC, 32, 96))
    a.e("s_mov_b32 exec_lo, 0xffff0000\ns_mov_b32 exec_hi, 0xffff0000")
    a.e(f"buffer_store_dwordx4 {X(ACC,4)}, v{VADR}, s[8:11], s27 offen offset:1024 {ST1}")
    a.e(f"buffer_store_dwordx4 {X(ACC+4,4)}, v{VADR}, s[8:11], s27 offen offset:1536 {ST1}")
    a.e("s_mov_b64 exec, -1")
    a.label(la)
    mark()
    if "gate" in OPT:
        post(VCT, C_J); fragw(); post(MEAN1, C_X)
    arrive()
    a.e(f"s_branch {l2nd}")
    a.label(lnj)
    if "gate" in OPT:
        post(VCT, C_J); fragw(); post(MEAN1, C_X)
    mark()
    a.label(l2nd)
    mark()
    a.e("s_setprio 0")
    a.e(f"v_mov_b32 v22, 0\nv_lshlrev_b32 v21, 2, v{V_I}\ns_lshl_b32 s23, s{S_WL}, 7\ns_add_u32 s23, s23, s{S_MB}")
    a.e(f"buffer_store_dword v22, v21, s[8:11], s23 offen {ST1}")
    l = lab("cw"); a.label(l)
    a.e(f"ds_read_b32 v{V_T0}, v{MEAN1} offset:{C_X}\ns_waitcnt lgkmcnt(0)\nv_readfirstlane_b32 s22, v{V_T0}\ns_nop 0\ns_cmp_lt_u32 s22, 4\ns_cbranch_scc1 {l}")
    a.e(f"s_lshl_b32 s23, s{S_CT}, 11\ns_lshl_b32 s22, s36, 15\ns_add_u32 s23, s23, s22\ns_add_u32 s23, s23, {L_X2}\nv_add_u32 v{V_T0}, s23, v{V_L16}")
    a.e(f"ds_read_b128 {X(XRES,4)}, v{V_T0}\nds_read_b128 {X(XRES+4,4)}, v{V_T0} offset:1024")
    mark(); mark()
    a.e("s_cmp_lg_u32 s41, 1\ns_cbranch_scc1 L_qa_end")
    a.e("s_mov_b32 s36, s43")
    cwait_imm(C_W, 4, V_T0)
    src_dma()
    tr_addr(WA, 44)
    for q in range(4): a.e(f"v_mov_b32 v{SA+q}, 0")
    a.e(f"s_lshl_b32 s24, s36, 15\ns_lshl_b32 s25, s{S_WL}, 13\ns_add_u32 s24, s24, s25\ns_add_u32 s25, s24, 4096")
    for rd_ in range(2):
        a.e("s_waitcnt vmcnt(0)" if rd_ == 0 else "s_waitcnt vmcnt(4)")
        for k in range(4):
            for h2 in range(2): a.e(f"ds_read_b64_tr_b16 {X(WF_+16*rd_+4*k+2*h2,2)}, v{WA} offset:{k*1024+h2*512}")
        a.e("s_waitcnt lgkmcnt(0)")
        if rd_ == 0: src_dma()
        for k in range(4): a.e(f"buffer_store_dwordx4 {X(WF_+16*rd_+4*k,4)}, v{V_L16}, s[8:11], s{24+rd_} offen offset:{k*1024} {ST1}")
    dot8(range(WF_, WF_ + 32), SA, "sum")
    a.e(f"s_nop 2\nv_add_f32 v{SA}, v{SA}, v{SA+1}\nv_add_f32 v{SA+2}, v{SA+2}, v{SA+3}\nv_add_f32 v{SA}, v{SA}, v{SA+2}")
    a.e(f"ds_write_b32 v{VADR+2}, v{SA} offset:256\ns_waitcnt lgkmcnt(0)")
    post(VCT, C_J)
    a.e(f"s_cmp_lg_u32 s{S_W}, 0\ns_cbranch_scc1 L_qa_end")
    cwait_imm(C_J, 8 if "gate" in OPT else 7, V_T0)
    a.e(f"ds_read2st64_b32 {X(SA,2)}, v{VADR+3} offset0:1 offset1:4\nds_read2st64_b32 {X(SA+2,2)}, v{VADR+3} offset0:7 offset1:10\ns_waitcnt lgkmcnt(0)")
    a.e(f"v_add_f32 v{SA}, v{SA}, v{SA+1}\nv_add_f32 v{SA+2}, v{SA+2}, v{SA+3}\nv_add_f32 v{SA}, v{SA}, v{SA+2}\nv_mov_b32 v{SA+1}, v{SA}")
    a.e(f"s_lshl_b32 s23, s36, 7\ns_add_u32 s23, s23, {CS}\nv_lshlrev_b32 v{V_T0}, 2, v{V_I}")
    a.e(f"v_permlane32_swap_b32 v{SA}, v{SA+1}\nv_add_f32 v{SA}, v{SA}, v{SA+1}")
    a.e(f"buffer_store_dword v{SA}, v{V_T0}, s[8:11], s23 offen {ST1}")
    a.e("s_branch L_qa_end")
    a.label(LH)
    VO = 80
    a.e(f"v_lshlrev_b32 v23, 2, v{V_L16}\ns_lshr_b32 s27, s2, 3\ns_lshl_b32 s27, s27, 14\ns_lshl_b32 s23, s{S_WL}, 12\ns_add_u32 s27, s27, s23")
    a.e("s_waitcnt lgkmcnt(0)")
    a.e("s_mov_b32 s80, s66\ns_mov_b32 s81, s67\ns_mov_b32 s82, 0x80000\ns_mov_b32 s83, 0x20000\ns_mov_b32 s66, 0x200000\ns_mov_b32 s67, 0x20000")
    ep_load()
    if "hsleep" in OPT: a.e("s_sleep 6")
    a.e("buffer_load_dword v20, v23, s[80:83], s27 offen")
    x_setup(VO, True)
    a.e(f"v_lshrrev_b32 v24, 7, v{V_L16}\nv_lshlrev_b32 v24, 10, v24\nv_and_b32 v17, 0x70, v{V_L16}\nv_lshrrev_b32 v18, 2, v{V_L16}\nv_and_b32 v18, 64, v18\nv_xor_b32 v17, v17, v18\nv_add_u32 v24, v24, v17")
    common_srds()
    x_addrs(VO + 4, RSTD1)
    sm_addrs()
    a.e(f"s_lshl_b32 s28, s{S_G}, 7\ns_lshl_b32 s23, s{S_WL}, 17\ns_add_u32 s28, s28, s23\ns_lshl_b32 s26, s{S_WL}, 14")
    a.e(f"v_bfe_u32 v{WA}, v{V_L16}, 6, 2\nv_lshl_add_u32 v{WA}, v{V_H}, 2, v{WA}\nv_lshlrev_b32 v{WA}, 7, v{WA}")
    a.e(f"v_bfe_u32 v18, v{V_L16}, 8, 1\nv_lshl_add_u32 v{WA}, v18, 5, v{WA}\nv_bfe_u32 v18, v{V_L16}, 4, 2\nv_lshl_add_u32 v{WA}, v18, 3, v{WA}")
    a.e(f"v_lshrrev_b32 v18, 1, v{V_L16}\nv_and_b32 v18, 64, v18\ns_and_b32 s23, s{S_WL}, 2\ns_lshl_b32 s23, s23, 5\nv_xor_b32 v18, s23, v18\nv_add_u32 v{WA}, v{WA}, v18")
    for q in range(12): a.e(f"v_mov_b32 v{SA+q}, 0")
    a.e(f"s_mov_b32 s39, {ONES2}\ns_and_b32 s36, s{S_WL}, 1\ns_lshl_b32 s23, s36, 15\ns_add_u32 s23, s23, {L_X2}\nv_add_u32 v{XA}, s23, v{V_L16}")
    stat_addr_T(36)
    a.e(f"s_lshl_b32 s22, s{S_WL}, 11\ns_add_u32 s22, s22, {L_Q}\nv_add_u32 v{VADR}, s22, v{V_L16}\ns_lshl_b32 s23, s36, 2\nv_add_u32 v{VADR+1}, s23, v{VCT}")
    set_tag()
    a.e("s_barrier")
    a.e("s_waitcnt vmcnt(0)")
    mark()
    TH = 4
    xdma(VO)
    l = lab("st_r")
    a.e("s_mov_b32 s29, 4")
    a.label(l)
    a.e(f"s_waitcnt vmcnt({TH})")
    for j in range(4):
        a.e("s_mov_b32 m0, s26\ns_add_u32 s26, s26, 1024")
        a.e("buffer_load_dwordx4 v24, s[80:83], s28 offen lds")
        a.e("s_add_u32 s28, s28, 8192")
    a.e(f"s_sub_u32 s29, s29, 1\ns_cmp_lg_u32 s29, 0\ns_cbranch_scc1 {l}")
    mark()
    a.e("s_waitcnt vmcnt(16)")
    if "gate" in OPT:
        a.e("s_sleep 2")
        cwait_imm(C_J, 3, V_T0)
    for c in range(16): a.e(f"ds_read_b64 {X(XF+2*c,2)}, v{VO+4+c}")
    a.e("s_waitcnt lgkmcnt(0)")
    for k in range(8): a.e(f"ds_write_b128 v{RSTD1}, {X(XF+4*k,4)} offset:{k*1024}")
    conv_dot()
    a.e("s_waitcnt vmcnt(0)")
    post(VCT, C_W)
    conv_red()
    a.e(f"ds_write_b32 v{VADR+2}, v{SA} offset:512")
    post(VCT, C_J2)
    mark()
    cwait_imm(C_W, 4, V_T0)
    mark()
    for k in range(32):
        for h2 in range(2): a.e(f"ds_read_b64_tr_b16 {X(WR+4*k+2*h2,2)}, v{WA} offset:{k*2048+h2*1024}")
        if k >= 6:
            a.e("s_waitcnt lgkmcnt(12)")
            dot8(range(WR + 4 * (k - 6), WR + 4 * (k - 6) + 4), SA + 8, "sum")
    a.e("s_waitcnt lgkmcnt(0)")
    post(VCT, C_H)
    mark()
    dot8(range(WR + 4 * 26, WR + 128), SA + 8, "sum")
    a.e(f"s_lshl_b32 s23, s{S_WL}, 7\ns_add_u32 s23, s23, {L_CSH}\nv_lshlrev_b32 v16, 2, v{V_I}\nv_add_u32 v16, s23, v16\nv_lshlrev_b32 v17, 4, v{V_H}\nv_add_u32 v17, s23, v17")
    a.e(f"v_add_f32 v{SA+8}, v{SA+8}, v{SA+9}\nv_add_f32 v{SA+10}, v{SA+10}, v{SA+11}\nv_add_f32 v{SA}, v{SA+8}, v{SA+10}\nv_mov_b32 v{SA+1}, v{SA}\ns_nop 1")
    a.e(f"v_permlane32_swap_b32 v{SA}, v{SA+1}\nv_add_f32 v{SA}, v{SA}, v{SA+1}")
    a.e(f"ds_write_b32 v16, v{SA}")
    for g in range(4): a.e(f"ds_read_b128 {X(RES+4*g,4)}, v17 offset:{32*g}")
    mark(); mark()
    lo = lab("st_oth")
    a.e(f"s_xor_b32 s23, s36, s{S_G}\ns_bitcmp1_b32 s23, 0\ns_cbranch_scc1 {lo}")
    l = lab("cw"); a.label(l)
    a.e(f"ds_read_b32 v{V_T0}, v{VADR+1} offset:{C_X}\ns_waitcnt lgkmcnt(0)\nv_readfirstlane_b32 s22, v{V_T0}\ns_nop 0\ns_cmp_lt_u32 s22, 4\ns_cbranch_scc1 {l}")
    mark()
    a.e("s_branch L_qa_gemm")
    a.label(lo)
    cwait_imm(C_J2, 4, V_T0)
    a.e(f"ds_read2st64_b32 {X(SA,2)}, v{VADR+3} offset0:2 offset1:5\nds_read2st64_b32 {X(SA+2,2)}, v{VADR+3} offset0:8 offset1:11\ns_waitcnt lgkmcnt(0)")
    a.e(f"v_add_f32 v{SA}, v{SA}, v{SA+1}\nv_add_f32 v{SA+2}, v{SA+2}, v{SA+3}\nv_add_f32 v{SA}, v{SA}, v{SA+2}")
    fin_stats(SA)
    mark()
    a.e("s_branch L_qa_gemm2")

def common_srds():
    srd(8, 4, WS_SIZE)
    srd(12, 6, 0x200000)
def ep_load():
    a.e(f"s_add_u32 s34, s4, {EPOFF}\ns_addc_u32 s35, s5, 0\ns_load_dword s58, s[34:35], 0")
def set_tag():
    a.e(f"s_waitcnt lgkmcnt(0)\ns_add_u32 s{S_TAG}, s58, 64\ns_xor_b32 s{S_TAG+1}, s{S_TAG}, 0x5a3c96e1")

def gen_main():
    L = NAME + "_kernel"
    a.raw(f".globl {L}\n.p2align 8\n.type {L},@function")
    a.label(L)
    a.e("s_load_dwordx16 s[64:79], s[0:1], 0")
    a.e("s_load_dwordx2 s[4:5], s[0:1], 80")
    a.e("s_load_dwordx2 s[6:7], s[0:1], 64")
    a.e("s_load_dwordx2 s[60:61], s[0:1], 8")
    a.e("s_cmp_ge_u32 s2, 256\ns_cbranch_scc1 L_end_main")
    a.e("s_getpc_b64 s[32:33]")
    a.label("L_pc0")
    a.e("v_lshlrev_b32 v24, 6, v0\nv_min_u32 v24, L_text_end-L_pc0-4, v24")
    a.e("global_load_dword v124, v24, s[32:33]")
    a.e(f"v_lshrrev_b32 v{V_T0}, 6, v0")
    a.e(f"v_and_b32 v{V_L16}, 63, v0")
    a.e(f"v_readfirstlane_b32 s{S_W}, v{V_T0}")
    a.e(f"v_and_b32 v{V_I}, 31, v0")
    a.e(f"v_bfe_u32 v{V_H}, v0, 5, 1")
    a.e(f"v_lshlrev_b32 v{V_L16}, 4, v{V_L16}")
    a.e(f"v_mov_b32 v{VONE}, 1\nv_mov_b32 v{VCT}, {L_C}\nv_mov_b32 v{V_T0+1}, 0")
    a.e(f"v_and_b32 v{V_T0}, 15, v0\nv_lshl_add_u32 v{V_T0}, v{V_T0}, 2, v{VCT}")
    a.e(f"ds_write_b32 v{V_T0}, v{V_T0+1}")
    a.e(f"s_and_b32 s{S_RB}, s2, 7\ns_lshl_b32 s{S_RB}, s{S_RB}, 2\ns_lshr_b32 s22, s2, 6\ns_add_u32 s{S_RB}, s{S_RB}, s22")
    a.e(f"s_bfe_u32 s{S_G}, s2, 0x30003")
    a.e(f"s_lshl_b32 s{S_RT}, s{S_RB}, 1\ns_and_b32 s22, s{S_G}, 1\ns_add_u32 s{S_RT}, s{S_RT}, s22\ns_lshr_b32 s{S_CB}, s{S_G}, 1")
    a.e(f"s_and_b32 s{S_WL}, s{S_W}, 3\ns_mov_b32 s{S_IT}, 0\ns_mov_b32 s{S_BUF}, 0\ns_mov_b32 s{S_IT1}, 1")
    a.e(f"s_lshl_b32 s{S_CT}, s{S_CB}, 2\ns_add_u32 s{S_CT}, s{S_CT}, s{S_WL}")
    a.e(f"s_lshl_b32 s22, s{S_RB}, 12\ns_lshl_b32 s{S_MB}, s{S_G}, 9\ns_add_u32 s{S_MB}, s{S_MB}, s22\ns_add_u32 s{S_MB}, s{S_MB}, {MBX}\ns_mov_b32 s{S_FAST}, 0")
    stamp_start()
    start_phase()
    a.label("L_iter")
    phase_qkva()
    phase_attna()
    phase_oproj("A")
    phase_qkvb()
    phase_attnb()
    phase_oproj("B")
    a.e(f"s_add_u32 s{S_IT}, s{S_IT}, 1\ns_add_u32 s{S_IT1}, s{S_IT1}, 1\ns_add_u32 s{S_BUF}, s{S_BUF}, {RSTRIDE}\ns_add_u32 s{S_TAG}, s{S_TAG}, 1")
    a.e(f"s_cmp_lt_u32 s{S_IT}, 2\ns_cbranch_scc1 L_iter")
    stamp_end()
    a.e(f"s_lshl_b32 s22, s2, 3\ns_add_u32 s22, s22, s{S_W}\ns_cmp_lg_u32 s22, 4\ns_cbranch_scc1 L_end_main")
    a.e(f"s_add_u32 s22, s58, 64\nv_mov_b32 v{V_T0}, s22\nv_mov_b32 v{V_T0+1}, 0\ns_mov_b32 s23, {EPOFF}\ns_mov_b64 exec, 1")
    a.e(f"buffer_store_dword v{V_T0}, v{V_T0+1}, s[8:11], s23 offen")
    a.e("s_endpgm")
    a.label("L_final")
    a.e(f"v_lshlrev_b32 v{VADR}, 10, v{V_I}")
    a.e(f"v_lshl_add_u32 v{VADR}, v{V_H}, 4, v{VADR}")
    a.e(f"s_lshl_b32 s22, s{S_RT}, 15\ns_lshl_b32 s23, s{S_CT}, 6\ns_add_u32 s22, s22, s23\ns_nop 4")
    for q in range(8): a.e(f"v_cvt_pk_bf16_f32 v{XRES+q}, v{ACC+2*q}, v{ACC+2*q+1}")
    a.e(f"v_permlane32_swap_b32 v{XRES}, v{XRES+2}\nv_permlane32_swap_b32 v{XRES+1}, v{XRES+3}")
    a.e(f"v_permlane32_swap_b32 v{XRES+4}, v{XRES+6}\nv_permlane32_swap_b32 v{XRES+5}, v{XRES+7}")
    for g in range(2):
        a.e(f"buffer_store_dwordx4 {X(XRES+4*g,4)}, v{VADR}, s[12:15], s22 offen offset:{32*g}")
    if INSTR:
        a.e("s_waitcnt vmcnt(0)")
        mark()
        stamp_end()
    a.label("L_end_main")
    a.e("s_endpgm")
    deferred.append(slow_routine)
    k = 0
    while k < len(deferred):
        deferred[k](); k += 1
    kernels.append((L, 256, 100 if INSTR else 84))

def main(out):
    hdr = open("cdna_kernels/" + NAME + ".s.ref").read().split("\n")
    head = [l for l in hdr if l.startswith(";") and "@launch" not in l and "Override" not in l and "grid=ceil" not in l]
    s = "\n".join(head) + "\n"
    s += f"; @launch grid=(256,1,1) block=(512,1,1) lds={LDS_SIZE}\n"
    if INSTR:
        per = "qa_poll qa_x qa_end aa_poll aa_kv aa_loop aa_end oa_poll oa_x oa_end qb_poll qb_x qb_end ab_poll ab_kv ab_p1 ab_p2 ab_fin ab_end ob_poll ob_x ob_end"
        s += "; @marks start s0 s1 s2 s3 s4 s5 " + per + " " + per + "\n"
    s += '.amdgcn_target "amdgcn-amd-amdhsa--gfx950"\n.text\n'
    gen_main()
    a.label("L_text_end")
    body = a.text()
    for p in check(body): print("HAZARD", p)
    s += body
    s += '.section .rodata,"a"\n'
    for lab_, vg, sg in kernels:
        s += f""".p2align 6
.amdhsa_kernel {lab_}
  .amdhsa_next_free_vgpr {vg}
  .amdhsa_next_free_sgpr {sg}
  .amdhsa_accum_offset {vg}
  .amdhsa_group_segment_fixed_size 0
  .amdhsa_kernarg_size 88
  .amdhsa_user_sgpr_count 2
  .amdhsa_user_sgpr_kernarg_segment_ptr 1
  .amdhsa_system_sgpr_workgroup_id_x 1
.end_amdhsa_kernel
"""
    open(out, "w").write(s)

if __name__ == "__main__":
    out = sys.argv[1] if len(sys.argv) > 1 else "cdna_kernels/" + NAME + ".s"
    if "instr" in sys.argv[2:]: INSTR = True
    OPT |= set(sys.argv[2:])
    main(out)
```
